```python
import torch

def _softmax(x, axis=-1):
    return torch.softmax(x, dim=axis)
def _gelu(x):
    return torch.nn.functional.gelu(x, approximate="tanh")
def _silu(x):
    return torch.nn.functional.silu(x)
def _sigmoid(x):
    return torch.sigmoid(x)
def _layernorm(x, axis=-1, eps=1e-5):
    m = x.mean(dim=axis, keepdim=True)
    v = x.var(dim=axis, keepdim=True, unbiased=False)
    return (x - m) / torch.sqrt(v + eps)
def _scatter_add(tgt, idx, src, axis=0):
    return tgt.clone().index_add_(axis, idx, src)
def _segment_sum(src, seg, n):
    out = torch.zeros((n,) + src.shape[1:], dtype=src.dtype)
    return out.index_add_(0, seg, src)
def _pad(x, pw):
    flat = tuple(v for pair in reversed(pw) for v in pair)
    return torch.nn.functional.pad(x, flat)

kernel_name = 'gated_mix__mha_block_cached__dense_activation_silu__decode'

def setup_inputs():

    _w = (lambda a: (lambda t: t.to(torch.bfloat16) if t.is_floating_point() else t)(torch.as_tensor(a)))
    def _A_setup():
        B, Sq, D = 2, 1, 640
        H, Sk, Dh = 32, 4096, 128
        return {
            "x": _w((lambda *s: torch.randn(*s, dtype=torch.bfloat16) * 0.05)(B, Sq, D)),
            "k_cache": _w((lambda *s: torch.randn(*s, dtype=torch.bfloat16) * 6.4)(B, H, Sk, Dh)),
            "v_cache": _w((lambda *s: torch.randn(*s, dtype=torch.bfloat16) * 0.2)(B, H, Sk, Dh)),
            "wq": _w((lambda *s: torch.randn(*s, dtype=torch.bfloat16) * 6.4)(D, H * Dh) * (D ** -0.5)),
            "wo": _w((lambda *s: torch.randn(*s, dtype=torch.bfloat16) * 0.2)(H * Dh, D) * ((H * Dh) ** -0.5)),
        }
    _A_in = _A_setup()

    def _B_setup():
        B, S, D, F = 2, 1, 640, 1728
        return {
            "x": _w((lambda *s: torch.randn(*s, dtype=torch.bfloat16) * 0.05)(B, S, D)),
            "w1": _w((lambda *s: torch.randn(*s, dtype=torch.bfloat16) * 6.4)(D, F) * (D ** -0.5)),
            "w2": _w((lambda *s: torch.randn(*s, dtype=torch.bfloat16) * 0.05)(F, D) * (F ** -0.5)),
        }
    _B_in = _B_setup()

    return {
        "A_x": _A_in["x"],
        "A_k_cache": _A_in["k_cache"],
        "A_v_cache": _A_in["v_cache"],
        "A_wq": _A_in["wq"],
        "A_wo": _A_in["wo"],
        "B_x": _B_in["x"],
        "B_w1": _B_in["w1"],
        "B_w2": _B_in["w2"],
        "gate_w": _w((lambda *s: torch.randn(*s, dtype=torch.bfloat16) * 0.05)(640) * 16.0),
    }

def reference(A_x, A_k_cache, A_v_cache, A_wq, A_wo, B_x, B_w1, B_w2, gate_w):
    def _A_ref(x, k_cache, v_cache, wq, wo):
        B, Sq, D = x.shape
        H, Dh = 32, 128
        q = (lambda x, *d: x.permute(*d))((x @ wq).reshape(B, Sq, H, Dh), 0, 2, 1, 3)
        scores = torch.einsum("bhqd,bhkd->bhqk", q, k_cache) * (Dh ** -0.5)
        p = _softmax(scores, axis=-1)
        o = torch.einsum("bhqk,bhkd->bhqd", p, v_cache)
        return (lambda x, *d: x.permute(*d))(o, 0, 2, 1, 3).reshape(B, Sq, H * Dh) @ wo

    def _B_ref(x, w1, w2):
        h = torch.einsum("bsd,df->bsf", x, w1)
        h = _silu(h)
        out = torch.einsum("bsf,fd->bsd", h, w2)
        return out

    x = A_x
    g = _sigmoid((x * gate_w).sum(-1, keepdims=True))
    a = _A_ref(x, A_k_cache, A_v_cache, A_wq, A_wo)
    b = _B_ref(x, B_w1, B_w2)
    return g * a + (1 - g) * b
```

```python
import sys

NAME = "gated_mix__mha_block_cached__dense_activation_silu__decode"

class A:
    def __init__(s):
        s.l = []
    def __call__(s, x):
        s.l.append("    " + x)
    def lab(s, x):
        s.l.append(x + ":")
    def raw(s, x):
        s.l.append(x)
    def text(s):
        return "\n".join(s.l) + "\n"

LOG2E = 0x3fb8aa3b
SCALE = 0x3db504f3

WS_OPART = 0
WS_ML    = 0x20000
WS_H     = 0x40000

def srd(a, d, lo, hi, nbytes):
    a(f"s_mov_b32 s{d}, s{lo}")
    a(f"s_and_b32 s{d+1}, s{hi}, 0xffff")
    a(f"s_mov_b32 s{d+2}, {nbytes}")
    a(f"s_mov_b32 s{d+3}, 0x00020000")

def rnd_bf16(a, v, tmp):
    a(f"v_cvt_pk_bf16_f32 v{tmp}, v{v}, v{v}")
    a(f"v_lshlrev_b32 v{v}, 16, v{tmp}")

def xreduce_1632(a, regs, tmp, op="v_add_f32"):
    for sw in ("v_permlane16_swap_b32", "v_permlane32_swap_b32"):
        for r, t in zip(regs, tmp):
            a(f"v_mov_b32 v{t}, v{r}")
        a("s_nop 1")
        for r, t in zip(regs, tmp):
            a(f"{sw} v{r}, v{t}")
        a("s_nop 1")
        for r, t in zip(regs, tmp):
            a(f"{op} v{r}, v{r}, v{t}")

def dpp_reduce(a, regs, rors, op="v_add_f32_dpp"):
    for ro in rors:
        if len(regs) < 3:
            a("s_nop 1")
        for r in regs:
            a(f"{op} v{r}, v{r}, v{r} row_ror:{ro} row_mask:0xf bank_mask:0xf")
        if len(regs) >= 3:
            pass

def kernel_a(a):
    a.raw(f".globl attn_kernel\n.p2align 8\n.type attn_kernel,@function")
    a.lab("attn_kernel")
    a("s_cmp_ge_u32 s2, 256")
    a("s_cbranch_scc1 La_end")
    a("s_load_dwordx16 s[16:31], s[0:1], 0")
    a("s_load_dwordx8 s[32:39], s[0:1], 64")
    a("s_and_b32 s3, s2, 7")
    a("s_lshl_b32 s3, s3, 2")
    a("s_lshr_b32 s4, s2, 3")
    a("s_and_b32 s4, s4, 3")
    a("s_add_u32 s3, s3, s4")
    a("s_lshr_b32 s5, s2, 5")
    a("s_lshr_b32 s6, s5, 2")
    a("s_and_b32 s7, s5, 3")
    a("v_lshrrev_b32 v20, 6, v0")
    a("v_and_b32 v1, 63, v0")
    a("v_readfirstlane_b32 s8, v20")
    a("v_and_b32 v2, 15, v1")
    a("v_lshlrev_b32 v2, 4, v2")
    a("v_lshrrev_b32 v3, 4, v1")
    a("v_lshlrev_b32 v4, 4, v1")
    a("v_lshl_add_u32 v5, v3, 13, v2")
    a("v_and_b32 v20, 15, v1")
    a("v_lshl_add_u32 v20, v20, 2, v3")
    a("v_lshlrev_b32 v20, 1, v20")
    a("s_waitcnt lgkmcnt(0)")
    srd(a, 40, 18, 19, 0x4000000)
    srd(a, 44, 20, 21, 0x4000000)
    srd(a, 48, 22, 23, 640*8192)
    srd(a, 52, 16, 17, 2560)
    srd(a, 56, 38, 39, 0x100000)
    srd(a, 60, 28, 29, 640*3456)
    a("s_lshl_b32 s9, s6, 5")
    a("s_add_u32 s9, s9, s3")
    a("s_lshl_b32 s9, s9, 20")
    a("s_lshl_b32 s10, s7, 18")
    a("s_add_u32 s9, s9, s10")
    a("s_lshl_b32 s10, s8, 15")
    a("s_add_u32 s9, s9, s10")
    a("s_mul_i32 s10, s6, 1280")
    a("s_mul_i32 s11, s8, 160")
    a("s_add_u32 s10, s10, s11")
    a("buffer_load_ushort v6, v20, s[52:55], s10 offen")
    a("buffer_load_ushort v7, v20, s[52:55], s10 offen offset:128")
    a("s_mul_i32 s10, s8, 80*8192")
    a("s_lshl_b32 s11, s3, 8")
    a("s_add_u32 s10, s10, s11")
    for t in range(20):
        a(f"buffer_load_dwordx4 v[{32+4*t}:{35+4*t}], v5, s[48:51], s10 offen")
        a("s_add_u32 s10, s10, 32768")
    a("s_mov_b32 s10, s9")
    KV = 112
    for t in range(32):
        a(f"buffer_load_dwordx4 v[{KV+4*t}:{KV+3+4*t}], v4, s[40:43], s10 offen offset:{(t%4)*1024} nt")
        if t % 4 == 3:
            a("s_add_u32 s10, s10, 4096")
    for i in range(8, 16):
        a(f"v_mov_b32 v{i}, 0")
    a("s_waitcnt vmcnt(52)")
    a("v_lshlrev_b32 v6, 16, v6")
    a("v_lshlrev_b32 v7, 16, v7")
    for t in range(20):
        a(f"s_waitcnt vmcnt({51-t})")
        src = 6 if t < 16 else 7
        a(f"v_mov_b32_dpp v21, v{src} row_newbcast:{t%16} row_mask:0xf bank_mask:0xf")
        for d in range(4):
            r = 32 + 4*t + d
            a(f"v_lshlrev_b32 v22, 16, v{r}")
            a(f"v_and_b32 v23, 0xffff0000, v{r}")
            a(f"v_fmac_f32 v{8+2*d}, v21, v22")
            a(f"v_fmac_f32 v{9+2*d}, v21, v23")
    xreduce_1632(a, list(range(8, 16)), list(range(20, 28)))
    a("v_lshlrev_b32 v28, 1, v2")
    a("s_lshl_b32 s10, s8, 9")
    a("v_add_u32 v29, s10, v28")
    a("ds_write_b128 v29, v[8:11]")
    a("ds_write_b128 v29, v[12:15] offset:16")
    a("s_waitcnt lgkmcnt(0)")
    a("s_barrier")
    for w in range(8):
        a(f"ds_read_b128 v[{32+8*w}:{35+8*w}], v28 offset:{w*512}")
        a(f"ds_read_b128 v[{36+8*w}:{39+8*w}], v28 offset:{w*512+16}")
    a("s_waitcnt lgkmcnt(0)")
    for w in range(1, 8):
        for e in range(8):
            a(f"v_add_f32 v{32+e}, v{32+e}, v{32+8*w+e}")
    for d in range(4):
        a(f"v_cvt_pk_bf16_f32 v{16+d}, v{32+2*d}, v{33+2*d}")
    a(f"s_mov_b32 s12, {SCALE}")
    a("s_mov_b32 s10, s9")
    for g4 in range(8):
        a("s_waitcnt vmcnt(28)")
        ts = [4*g4 + i for i in range(4)]
        for d in range(4):
            for t in ts:
                k = KV + 4*t + d
                c = "0" if d == 0 else f"v{32+t}"
                a(f"v_dot2_f32_bf16 v{32+t}, v{k}, v{16+d}, {c}")
        for t in ts:
            a(f"buffer_load_dwordx4 v[{KV+4*t}:{KV+3+4*t}], v4, s[44:47], s10 offen offset:{(t%4)*1024} nt")
        a("s_add_u32 s10, s10, 4096")
        for ro in (8, 4, 2, 1):
            for t in ts:
                a(f"v_add_f32_dpp v{32+t}, v{32+t}, v{32+t} row_ror:{ro} row_mask:0xf bank_mask:0xf")
        for i, t in enumerate(ts):
            a(f"v_cvt_pk_bf16_f32 v{20+i}, v{32+t}, v{32+t}")
        for i, t in enumerate(ts):
            a(f"v_lshlrev_b32 v{32+t}, 16, v{20+i}")
        for t in ts:
            a(f"v_mul_f32 v{32+t}, s12, v{32+t}")
        for i, t in enumerate(ts):
            a(f"v_cvt_pk_bf16_f32 v{20+i}, v{32+t}, v{32+t}")
        for i, t in enumerate(ts):
            a(f"v_lshlrev_b32 v{32+t}, 16, v{20+i}")
    a("v_max3_f32 v28, v32, v33, v34")
    for t in range(35, 63, 2):
        a(f"v_max3_f32 v28, v28, v{t}, v{t+1}")
    a("v_max_f32 v28, v28, v63")
    xreduce_1632(a, [28], [20], op="v_max_f32")
    a(f"s_mov_b32 s13, {LOG2E}")
    a("v_mul_f32 v29, s13, v28")
    for t in range(32):
        a(f"v_fma_f32 v{32+t}, v{32+t}, s13, -v29")
    for t in range(32):
        a(f"v_exp_f32 v{32+t}, v{32+t}")
    a("s_nop 0")
    a("v_add_f32 v30, v32, v33")
    for t in range(34, 64):
        a(f"v_add_f32 v30, v30, v{t}")
    xreduce_1632(a, [30], [20])
    for i in range(8, 16):
        a(f"v_mov_b32 v{i}, 0")
    for t in range(32):
        a(f"s_waitcnt vmcnt({31-t})")
        for d in range(4):
            r = KV + 4*t + d
            a(f"v_lshlrev_b32 v22, 16, v{r}")
            a(f"v_and_b32 v23, 0xffff0000, v{r}")
            a(f"v_fmac_f32 v{8+2*d}, v{32+t}, v22")
            a(f"v_fmac_f32 v{9+2*d}, v{32+t}, v23")
    xreduce_1632(a, list(range(8, 16)), list(range(20, 28)))
    a("v_lshlrev_b32 v20, 1, v2")
    a("s_lshl_b32 s10, s8, 9")
    a("v_add_u32 v21, s10, v20")
    a("ds_write_b128 v21, v[8:11] offset:4096")
    a("ds_write_b128 v21, v[12:15] offset:4112")
    a("s_lshl_b32 s10, s8, 3")
    a("v_mov_b32 v22, s10")
    a("v_mov_b32 v29, v30")
    a("ds_write_b64 v22, v[28:29] offset:8192")
    a("s_waitcnt lgkmcnt(0)")
    a("s_barrier")
    a("s_cmp_lg_u32 s8, 0")
    a("s_cbranch_scc1 La_mlp")
    a("v_mov_b32 v22, 0")
    for w in range(4):
        a(f"ds_read_b128 v[{32+4*w}:{35+4*w}], v22 offset:{8192+16*w}")
    for w in range(8):
        a(f"ds_read_b128 v[{64+8*w}:{67+8*w}], v20 offset:{4096+w*512}")
        a(f"ds_read_b128 v[{68+8*w}:{71+8*w}], v20 offset:{4096+w*512+16}")
    a("s_waitcnt lgkmcnt(0)")
    a("v_max3_f32 v28, v32, v34, v36")
    a("v_max3_f32 v28, v28, v38, v40")
    a("v_max3_f32 v28, v28, v42, v44")
    a("v_max_f32 v28, v28, v46")
    a("v_mul_f32 v29, s13, v28")
    for w in range(8):
        a(f"v_fma_f32 v{32+2*w}, v{32+2*w}, s13, -v29")
    for w in range(8):
        a(f"v_exp_f32 v{32+2*w}, v{32+2*w}")
    a("s_nop 0")
    a("v_mul_f32 v29, v32, v33")
    for w in range(1, 8):
        a(f"v_fmac_f32 v29, v{32+2*w}, v{33+2*w}")
    for e in range(8):
        a(f"v_mul_f32 v{8+e}, v32, v{64+e}")
    for w in range(1, 8):
        for e in range(8):
            a(f"v_fmac_f32 v{8+e}, v{32+2*w}, v{64+8*w+e}")
    a("s_lshl_b32 s10, s6, 5")
    a("s_add_u32 s10, s10, s3")
    a("s_lshl_b32 s10, s10, 2")
    a("s_add_u32 s10, s10, s7")
    a("s_lshl_b32 s11, s10, 9")
    a("v_cmp_gt_u32 vcc, 16, v1")
    a("s_and_saveexec_b64 s[14:15], vcc")
    a("buffer_store_dwordx4 v[8:11], v20, s[56:59], s11 offen")
    a("buffer_store_dwordx4 v[12:15], v20, s[56:59], s11 offen offset:16")
    a("s_lshl_b32 s11, s10, 3")
    a(f"s_add_u32 s11, s11, {WS_ML}")
    a("v_mov_b32 v22, 0")
    a("v_cmp_eq_u32 vcc, 0, v1")
    a("s_and_b64 exec, exec, vcc")
    a("buffer_store_dwordx2 v[28:29], v22, s[56:59], s11 offen")
    a("s_mov_b64 exec, s[14:15]")
    a.lab("La_mlp")
    a("s_cmp_ge_u32 s2, 54")
    a("s_cbranch_scc1 La_end")
    a("v_lshrrev_b32 v20, 2, v1")
    a("v_and_b32 v21, 3, v1")
    a("s_movk_i32 s10, 3456")
    a("v_mul_lo_u32 v22, v20, s10")
    a("v_lshl_add_u32 v22, v21, 4, v22")
    a("v_lshlrev_b32 v23, 1, v20")
    a("s_mul_i32 s10, s8, 80*3456")
    a("s_lshl_b32 s11, s2, 6")
    a("s_add_u32 s10, s10, s11")
    for i in range(5):
        a(f"buffer_load_dwordx4 v[{32+4*i}:{35+4*i}], v22, s[60:63], s10 offen")
        a(f"s_add_u32 s10, s10, {16*3456}")
    a("s_mul_i32 s10, s8, 160")
    for b in range(2):
        for i in range(5):
            a(f"buffer_load_ushort v{56+5*b+i}, v23, s[52:55], s10 offen offset:{b*1280+32*i}")
    for i in range(72, 88):
        a(f"v_mov_b32 v{i}, 0")
    a("s_waitcnt vmcnt(0)")
    for i in range(56, 66):
        a(f"v_lshlrev_b32 v{i}, 16, v{i}")
    for i in range(5):
        for d in range(4):
            r = 32 + 4*i + d
            a(f"v_lshlrev_b32 v24, 16, v{r}")
            a(f"v_and_b32 v25, 0xffff0000, v{r}")
            for b in range(2):
                a(f"v_fmac_f32 v{72+8*b+2*d}, v{56+5*b+i}, v24")
                a(f"v_fmac_f32 v{73+8*b+2*d}, v{56+5*b+i}, v25")
    regs = list(range(72, 88))
    dpp_reduce(a, regs, (4, 8))
    xreduce_1632(a, regs, list(range(88, 104)))
    a("s_lshl_b32 s10, s8, 8")
    a("v_lshlrev_b32 v24, 6, v21")
    a("v_add_u32 v24, s10, v24")
    a("s_barrier")
    for k in range(4):
        a(f"ds_write_b128 v24, v[{72+4*k}:{75+4*k}] offset:{12288+16*k}")
    a("s_waitcnt lgkmcnt(0)")
    a("s_barrier")
    a("s_cmp_lg_u32 s8, 0")
    a("s_cbranch_scc1 La_end")
    a("v_lshrrev_b32 v20, 5, v1")
    a("v_and_b32 v21, 31, v1")
    a("v_lshrrev_b32 v22, 3, v21")
    a("v_lshlrev_b32 v22, 6, v22")
    a("v_lshl_add_u32 v22, v20, 5, v22")
    a("v_and_b32 v23, 7, v21")
    a("v_lshl_add_u32 v22, v23, 2, v22")
    for w in range(8):
        a(f"ds_read_b32 v{32+w}, v22 offset:{12288+256*w}")
    a("s_waitcnt lgkmcnt(0)")
    for w in range(1, 8):
        a(f"v_add_f32 v32, v32, v{32+w}")
    rnd_bf16(a, 32, 33)
    a("v_mul_f32 v33, s13, v32")
    a("v_exp_f32 v33, -v33")
    a("s_nop 0")
    a("v_add_f32 v33, 1.0, v33")
    a("v_rcp_f32 v33, v33")
    a("s_nop 0")
    a("v_mul_f32 v32, v32, v33")
    rnd_bf16(a, 32, 33)
    a("s_movk_i32 s10, 1728*4")
    a("v_mul_lo_u32 v22, v20, s10")
    a("v_lshl_add_u32 v22, v21, 2, v22")
    a("s_lshl_b32 s11, s2, 7")
    a(f"s_add_u32 s11, s11, {WS_H}")
    a("buffer_store_dword v32, v22, s[56:59], s11 offen")
    a.lab("La_end")
    a("s_endpgm")

def kernel_b(a):
    a.raw(f".globl final_kernel\n.p2align 8\n.type final_kernel,@function")
    a.lab("final_kernel")
    a("s_cmp_ge_u32 s2, 80")
    a("s_cbranch_scc1 Lb_end")
    a("s_load_dwordx16 s[16:31], s[0:1], 0")
    a("s_load_dwordx8 s[32:39], s[0:1], 64")
    a("v_lshrrev_b32 v20, 6, v0")
    a("v_and_b32 v1, 63, v0")
    a("v_readfirstlane_b32 s8, v20")
    a("s_movk_i32 s10, 5120")
    a("v_mul_lo_u32 v2, v0, s10")
    a("v_lshrrev_b32 v3, 5, v0")
    a("v_and_b32 v4, 31, v0")
    a("v_lshlrev_b32 v4, 4, v4")
    a("v_lshl_add_u32 v4, v3, 11, v4")
    a("v_lshlrev_b32 v5, 5, v3")
    a("v_lshlrev_b32 v6, 4, v0")
    a("v_lshlrev_b32 v7, 2, v1")
    a("s_waitcnt lgkmcnt(0)")
    srd(a, 40, 24, 25, 4096*1280)
    srd(a, 44, 30, 31, 1728*1280)
    srd(a, 48, 38, 39, 0x100000)
    srd(a, 52, 16, 17, 2560)
    srd(a, 56, 32, 33, 1280)
    srd(a, 60, 34, 35, 2560)
    a(f"s_add_u32 s64, s38, {WS_H}")
    a("s_addc_u32 s65, s39, 0")
    a("s_and_b32 s65, s65, 0xffff")
    a(f"s_mov_b32 s66, {1728*4}")
    a("s_mov_b32 s67, 0x00020000")
    a(f"s_add_u32 s68, s38, {WS_H+1728*4}")
    a("s_addc_u32 s69, s39, 0")
    a("s_and_b32 s69, s69, 0xffff")
    a(f"s_mov_b32 s70, {1728*4}")
    a("s_mov_b32 s71, 0x00020000")
    a(f"s_mov_b32 s13, {LOG2E}")
    for k in range(5):
        a(f"buffer_load_dword v{200+k}, v7, s[52:55], 0 offen offset:{256*k}")
        a(f"buffer_load_dword v{205+k}, v7, s[52:55], 0 offen offset:{1280+256*k}")
        a(f"buffer_load_dword v{210+k}, v7, s[56:59], 0 offen offset:{256*k}")
    for i in range(2):
        for b in range(2):
            a(f"s_mov_b32 s10, {b*65536 + i*32768}")
            for s in range(4):
                r = 32 + ((i*2+b)*4+s)*4
                a(f"buffer_load_dwordx4 v[{r}:{r+3}], v4, s[48:51], s10 offen offset:{s*512}")
    a(f"s_mov_b32 s10, {WS_ML}")
    for i in range(2):
        for b in range(2):
            r = 96 + (i*2+b)*8
            a(f"buffer_load_dwordx4 v[{r}:{r+3}], v5, s[48:51], s10 offen offset:{b*1024+i*512}")
            a(f"buffer_load_dwordx4 v[{r+4}:{r+7}], v5, s[48:51], s10 offen offset:{b*1024+i*512+16}")
    a("buffer_load_dwordx4 v[128:131], v6, s[64:67], 0 offen")
    a("buffer_load_dwordx4 v[132:135], v6, s[68:71], 0 offen")
    a("s_lshl_b32 s10, s2, 4")
    for i in range(2):
        for r in range(4):
            q = 136 + (i*4+r)*4
            a(f"buffer_load_dwordx4 v[{q}:{q+3}], v2, s[40:43], s10 offen offset:{r*1280}")
        if i == 0:
            a(f"s_add_u32 s10, s10, {2048*1280}")
    a("s_lshl_b32 s10, s2, 4")
    for r in range(4):
        q = 168 + r*4
        a(f"buffer_load_dwordx4 v[{q}:{q+3}], v2, s[44:47], s10 offen offset:{r*1280}")
    a("s_waitcnt vmcnt(40)")
    a("s_waitcnt vmcnt(38)")
    a("v_mov_b32 v216, 0")
    a("v_mov_b32 v217, 0")
    for k in range(5):
        for half in range(2):
            if half == 0:
                a(f"v_lshlrev_b32 v218, 16, v{210+k}")
                a(f"v_lshlrev_b32 v219, 16, v{200+k}")
                a(f"v_lshlrev_b32 v220, 16, v{205+k}")
            else:
                a(f"v_and_b32 v218, 0xffff0000, v{210+k}")
                a(f"v_and_b32 v219, 0xffff0000, v{200+k}")
                a(f"v_and_b32 v220, 0xffff0000, v{205+k}")
            a("v_mul_f32 v219, v219, v218")
            a("v_mul_f32 v220, v220, v218")
            rnd_bf16(a, 219, 221)
            rnd_bf16(a, 220, 221)
            a("v_add_f32 v216, v216, v219")
            a("v_add_f32 v217, v217, v220")
    a("s_nop 1")
    for ro in (8, 4, 2, 1):
        a(f"v_add_f32_dpp v216, v216, v216 row_ror:{ro} row_mask:0xf bank_mask:0xf")
        a(f"v_add_f32_dpp v217, v217, v217 row_ror:{ro} row_mask:0xf bank_mask:0xf")
        a("s_nop 0")
    xreduce_1632(a, [216, 217], [218, 219])
    rnd_bf16(a, 216, 218)
    rnd_bf16(a, 217, 218)
    for r in (216, 217):
        a(f"v_mul_f32 v218, s13, v{r}")
        a("v_exp_f32 v218, -v218")
        a("s_nop 0")
        a("v_add_f32 v218, 1.0, v218")
        a(f"v_rcp_f32 v{r}, v218")
        a("s_nop 0")
        rnd_bf16(a, r, 218)
    a("s_waitcnt vmcnt(14)")
    for i in range(2):
        for b in range(2):
            ml = 96 + (i*2+b)*8
            P = 32 + ((i*2+b)*4)*4
            a(f"v_max3_f32 v20, v{ml}, v{ml+2}, v{ml+4}")
            a(f"v_max_f32 v20, v20, v{ml+6}")
            a("v_mul_f32 v20, s13, v20")
            for s in range(4):
                a(f"v_fma_f32 v{ml+2*s}, v{ml+2*s}, s13, -v20")
            for s in range(4):
                a(f"v_exp_f32 v{ml+2*s}, v{ml+2*s}")
            a("s_nop 0")
            a(f"v_mul_f32 v21, v{ml}, v{ml+1}")
            for s in range(1, 4):
                a(f"v_fmac_f32 v21, v{ml+2*s}, v{ml+2*s+1}")
            a("v_rcp_f32 v21, v21")
            for e in range(4):
                a(f"v_mul_f32 v{P+e}, v{ml}, v{P+e}")
            for s in range(1, 4):
                for e in range(4):
                    a(f"v_fmac_f32 v{P+e}, v{ml+2*s}, v{P+4*s+e}")
            for e in range(4):
                a(f"v_mul_f32 v{P+e}, v{P+e}, v21")
            for e in range(4):
                rnd_bf16(a, P+e, 22)
    for r in list(range(184, 200)) + list(range(224, 240)):
        a(f"v_mov_b32 v{r}, 0")
    a("s_waitcnt vmcnt(0)")
    for i in range(2):
        for r in range(4):
            q = 136 + (i*4+r)*4
            for d in range(4):
                a(f"v_lshlrev_b32 v20, 16, v{q+d}")
                a(f"v_and_b32 v21, 0xffff0000, v{q+d}")
                for b in range(2):
                    o = 32 + ((i*2+b)*4)*4 + r
                    a(f"v_fmac_f32 v{184+8*b+2*d}, v{o}, v20")
                    a(f"v_fmac_f32 v{185+8*b+2*d}, v{o}, v21")
    for r in range(4):
        q = 168 + r*4
        for d in range(4):
            a(f"v_lshlrev_b32 v20, 16, v{q+d}")
            a(f"v_and_b32 v21, 0xffff0000, v{q+d}")
            for b in range(2):
                o = 128 + 4*b + r
                a(f"v_fmac_f32 v{224+8*b+2*d}, v{o}, v20")
                a(f"v_fmac_f32 v{225+8*b+2*d}, v{o}, v21")
    regs = list(range(184, 200)) + list(range(224, 240))
    a("s_nop 1")
    dpp_reduce(a, regs, (8, 4, 2, 1))
    a("v_lshrrev_b32 v20, 4, v1")
    a("s_lshl_b32 s10, s8, 2")
    a("v_add_u32 v20, s10, v20")
    a("v_lshlrev_b32 v20, 7, v20")
    for k in range(4):
        a(f"ds_write_b128 v20, v[{184+4*k}:{187+4*k}] offset:{16*k}")
        a(f"ds_write_b128 v20, v[{224+4*k}:{227+4*k}] offset:{64+16*k}")
    a("s_waitcnt lgkmcnt(0)")
    a("s_barrier")
    a("s_cmp_lg_u32 s8, 0")
    a("s_cbranch_scc1 Lb_end")
    a("v_and_b32 v20, 15, v1")
    a("v_lshlrev_b32 v21, 2, v20")
    for sl in range(32):
        a(f"ds_read_b32 v{32+sl}, v21 offset:{sl*128}")
        a(f"ds_read_b32 v{64+sl}, v21 offset:{sl*128+64}")
    a("s_waitcnt lgkmcnt(0)")
    for sl in range(1, 32):
        a(f"v_add_f32 v32, v32, v{32+sl}")
        a(f"v_add_f32 v64, v64, v{64+sl}")
    rnd_bf16(a, 32, 22)
    rnd_bf16(a, 64, 22)
    a("v_cmp_gt_u32 vcc, 8, v20")
    a("s_nop 1")
    a("v_cndmask_b32 v23, v217, v216, vcc")
    a("v_mul_f32 v24, v23, v32")
    rnd_bf16(a, 24, 22)
    a("v_sub_f32 v25, 1.0, v23")
    rnd_bf16(a, 25, 22)
    a("v_mul_f32 v25, v25, v64")
    rnd_bf16(a, 25, 22)
    a("v_add_f32 v24, v24, v25")
    a("v_cvt_pk_bf16_f32 v24, v24, v24")
    a("v_lshrrev_b32 v25, 3, v20")
    a("s_movk_i32 s10, 1280")
    a("v_mul_lo_u32 v25, v25, s10")
    a("v_and_b32 v26, 7, v20")
    a("v_lshl_add_u32 v25, v26, 1, v25")
    a("s_lshl_b32 s10, s2, 4")
    a("v_cmp_gt_u32 vcc, 16, v1")
    a("s_and_saveexec_b64 s[14:15], vcc")
    a("buffer_store_short v24, v25, s[60:63], s10 offen")
    a.lab("Lb_end")
    a("s_endpgm")

def desc(name, vgpr):
    return f""".p2align 6
.amdhsa_kernel {name}
  .amdhsa_next_free_vgpr {vgpr}
  .amdhsa_next_free_sgpr 102
  .amdhsa_accum_offset {vgpr}
  .amdhsa_group_segment_fixed_size 0
  .amdhsa_kernarg_size 96
  .amdhsa_user_sgpr_count 2
  .amdhsa_user_sgpr_kernarg_segment_ptr 1
  .amdhsa_system_sgpr_workgroup_id_x 1
.end_amdhsa_kernel
"""

def main():
    a = A()
    hdr = open(f"cdna_kernels/{NAME}.s.ref").read().split("; Override launch")[0]
    a.raw(hdr.rstrip())
    a.raw("; @launch kernel=attn_kernel grid=(256,1,1) block=(512,1,1) lds=16384")
    a.raw("; @launch kernel=final_kernel grid=(80,1,1) block=(512,1,1) lds=8192")
    a.raw('.amdgcn_target "amdgcn-amd-amdhsa--gfx950"')
    a.raw(".text")
    kernel_a(a)
    kernel_b(a)
    a.raw('.section .rodata,"a"')
    a.raw(desc("attn_kernel", 256))
    a.raw(desc("final_kernel", 256))
    out = sys.argv[1] if len(sys.argv) > 1 else f"cdna_kernels/{NAME}.s"
    open(out, "w").write(a.text())

main()
```

```python
import sys, os
NAME = "gated_mix__mha_block_cached__dense_activation_silu__decode"
NT = " nt"
DIAG = os.environ.get("DIAG", "0") == "1"
MLP0 = 202
SPOLL = os.environ.get("SPOLL","0")=="1"
SLEEP = os.environ.get("SLEEP","2")
MAP = os.environ.get("MAP","0")
TST = os.environ.get("TST","")
WQF = os.environ.get("WQF"," nt")

class A:
    def __init__(s): s.l = []
    def __call__(s, x): s.l.append("    " + x)
    def lab(s, x): s.l.append(x + ":")
    def raw(s, x): s.l.append(x)
    def text(s): return "\n".join(s.l) + "\n"

LOG2E = 0x3fb8aa3b
SCALE = 0x3db504f3
WS_OPART = 0
WS_ML    = 0x20000
WS_H     = 0x40000
WS_PART  = 0x90000
WS_DIAG  = 0xC0000
WS_FLAG  = 0xB0000
WS_Q = 0x50000
QP = 12288
LDS_EP = 20480
KV = 112
CT_HEAD = 0
CT_MLP = 128
CT_NB = 160

def stamp(a, idx):
    if not DIAG: return
    a("s_memrealtime s[90:91]")
    a("s_waitcnt lgkmcnt(0)")
    a("s_lshl_b32 s92, s2, 8")
    a("s_lshl_b32 s93, s8, 5")
    a("s_add_u32 s92, s92, s93")
    a(f"s_add_u32 s92, s92, {WS_DIAG + idx*4}")
    a("v_mov_b32 v26, s90")
    a("v_mov_b32 v27, 0")
    a("s_mov_b64 s[94:95], exec")
    a("s_mov_b64 exec, 1")
    a("buffer_store_dword v26, v27, s[56:59], s92 offen")
    a("s_mov_b64 exec, s[94:95]")

def srd(a, d, lo, hi, nbytes):
    a(f"s_mov_b32 s{d}, s{lo}")
    a(f"s_and_b32 s{d+1}, s{hi}, 0xffff")
    a(f"s_mov_b32 s{d+2}, {nbytes}")
    a(f"s_mov_b32 s{d+3}, 0x00020000")

def rnd_bf16(a, v, tmp):
    a(f"v_cvt_pk_bf16_f32 v{tmp}, v{v}, v{v}")
    a(f"v_lshlrev_b32 v{v}, 16, v{tmp}")

def xreduce(a, regs, tmp, op="v_add_f32"):
    for sw in ("v_permlane16_swap_b32", "v_permlane32_swap_b32"):
        for r, t in zip(regs, tmp): a(f"v_mov_b32 v{t}, v{r}")
        a("s_nop 1")
        for r, t in zip(regs, tmp): a(f"{sw} v{r}, v{t}")
        a("s_nop 1")
        for r, t in zip(regs, tmp): a(f"{op} v{r}, v{r}, v{t}")

def dpp_reduce(a, regs, rors):
    a("s_nop 1")
    for ro in rors:
        for r in regs:
            a(f"v_add_f32_dpp v{r}, v{r}, v{r} row_ror:{ro} row_mask:0xf bank_mask:0xf")
        if len(regs) < 3: a("s_nop 1")

_lab = [0]
def poll(a, off_sreg, target):
    _lab[0] += 1
    L = f"Lpoll{_lab[0]}"
    a("v_mov_b32 v30, 0")
    a("s_mov_b32 s15, 0")
    a.lab(L)
    if SPOLL:
        a(f"s_load_dword s14, s[36:37], {off_sreg} glc")
        a("s_waitcnt lgkmcnt(0)")
    else:
        a(f"buffer_load_dword v29, v30, s[64:67], {off_sreg} offen sc1")
        a("s_waitcnt vmcnt(0)")
        a("v_readfirstlane_b32 s14, v29")
    a(f"s_cmp_ge_u32 s14, {target}")
    a(f"s_cbranch_scc1 {L}d")
    a(f"s_sleep {SLEEP}")
    a("s_add_u32 s15, s15, 1")
    a("s_cmp_lt_u32 s15, 200000")
    a(f"s_cbranch_scc1 {L}")
    a.lab(L + "d")

def pollf(a, vaddr, vep):
    _lab[0] += 1
    L = f"Lpf{_lab[0]}"
    a("s_mov_b32 s15, 0")
    a(f"s_mov_b32 s14, {WS_FLAG}")
    a.lab(L)
    a(f"buffer_load_dword v29, v{vaddr}, s[56:59], s14 offen sc1")
    a("s_waitcnt vmcnt(0)")
    a(f"v_cmp_ne_u32 vcc, v29, v{vep}")
    a("s_nop 4")
    a(f"s_cbranch_vccz {L}d")
    a(f"s_sleep {SLEEP}")
    a("s_add_u32 s15, s15, 1")
    a("s_cmp_lt_u32 s15, 200000")
    a(f"s_cbranch_scc1 {L}")
    a.lab(L + "d")

def setflag(a, off_sreg, vep):
    a("s_mov_b64 s[14:15], exec")
    a("s_mov_b64 exec, 1")
    a("v_mov_b32 v30, 0")
    a(f"buffer_store_dword v{vep}, v30, s[56:59], {off_sreg} offen sc1")
    a("s_mov_b64 exec, s[14:15]")

def signal(a, off_sreg, ret=False):
    a("s_mov_b64 s[14:15], exec")
    a("s_mov_b64 exec, 1")
    a("v_mov_b32 v29, 1")
    a("v_mov_b32 v30, 0")
    a(f"buffer_atomic_add v29, v30, s[64:67], {off_sreg} offen{' sc0' if ret else ''} sc1")
    a("s_mov_b64 exec, s[14:15]")

def kernel(a):
    K = NAME + "_kernel"
    a.raw(f".globl {K}\n.p2align 8\n.type {K},@function")
    a.lab(K)
    a("s_cmp_ge_u32 s2, 256")
    a("s_cbranch_scc1 L_end")
    a("s_load_dwordx16 s[16:31], s[0:1], 0")
    a("s_load_dwordx8 s[32:39], s[0:1], 64")
    a("s_and_b32 s3, s2, 7")
    a("s_lshl_b32 s3, s3, 2")
    a("s_lshr_b32 s4, s2, 3")
    a("s_and_b32 s4, s4, 3")
    a("s_add_u32 s3, s3, s4")
    a("s_lshr_b32 s5, s2, 5")
    if MAP == "1":
        a("s_lshr_b32 s3, s2, 3")
        a("s_and_b32 s5, s2, 7")
    a("s_lshr_b32 s6, s5, 2")
    a("s_and_b32 s7, s5, 3")
    a("v_lshrrev_b32 v20, 6, v0")
    a("v_and_b32 v1, 63, v0")
    a("v_readfirstlane_b32 s8, v20")
    a("v_and_b32 v2, 15, v1")
    a("v_lshlrev_b32 v2, 4, v2")
    a("v_lshrrev_b32 v3, 4, v1")
    a("v_lshlrev_b32 v4, 4, v1")
    a("v_lshl_add_u32 v5, v3, 13, v2")
    a("v_and_b32 v20, 15, v1")
    a("v_lshl_add_u32 v20, v20, 2, v3")
    a("v_lshlrev_b32 v20, 1, v20")
    a(f"s_mov_b32 s12, {SCALE}")
    a(f"s_mov_b32 s13, {LOG2E}")
    a("s_waitcnt lgkmcnt(0)")
    srd(a, 40, 18, 19, 0x4000000)
    srd(a, 44, 20, 21, 0x4000000)
    srd(a, 48, 22, 23, 640*8192)
    srd(a, 52, 16, 17, 2560)
    srd(a, 56, 38, 39, 0x100000)
    srd(a, 60, 28, 29, 640*3456)
    srd(a, 64, 36, 37, 256)
    srd(a, 72, 32, 33, 1280)
    srd(a, 76, 34, 35, 2560)
    stamp(a, 0)
    a("s_lshl_b32 s9, s6, 5")
    a("s_add_u32 s9, s9, s3")
    a("s_lshl_b32 s9, s9, 20")
    a("s_lshl_b32 s10, s7, 18")
    a("s_add_u32 s9, s9, s10")
    a("s_lshl_b32 s10, s8, 15")
    a("s_add_u32 s9, s9, s10")
    a("v_lshrrev_b32 v20, 1, v1")
    a("v_and_b32 v21, 1, v1")
    a("s_cmp_lg_u32 s8, 7")
    a("s_cbranch_scc1 L_qld")
    a("s_memrealtime s[100:101]")
    a("s_waitcnt lgkmcnt(0)")
    a("s_or_b32 s100, s100, 1")
    a("v_mov_b32 v6, s100")
    a("v_mov_b32 v7, 0")
    a("v_mov_b32 v22, 0")
    a("s_movk_i32 s11, 240")
    a("s_mov_b64 exec, 1")
    a("buffer_atomic_cmpswap v[6:7], v22, s[64:67], s11 offen sc0 sc1")
    a("s_mov_b64 exec, -1")
    a("s_waitcnt vmcnt(0)")
    a("v_readfirstlane_b32 s101, v6")
    a("s_cmp_eq_u32 s101, 0")
    a("s_cselect_b32 s101, s100, s101")
    a("v_mov_b32 v6, s101")
    a(f"v_mov_b32 v22, {LDS_EP}")
    a("ds_write_b32 v22, v6")
    for r in list(range(56, 62)) + list(range(64, 76)): a(f"v_mov_b32 v{r}, 0")
    a("s_branch L_kld")
    a.lab("L_qld")
    a("v_lshlrev_b32 v22, 13, v20")
    a("v_lshl_add_u32 v22, v21, 4, v22")
    a("v_lshlrev_b32 v23, 1, v20")
    a("s_lshl_b32 s10, s8, 6")
    for k in range(3):
        for b in range(2):
            a(f"buffer_load_ushort v{56+2*k+b}, v23, s[52:55], s10 offen offset:{b*1280 + 448*k}")
    a("s_lshl_b32 s10, s8, 18")
    a("s_lshl_b32 s11, s3, 8")
    a("s_add_u32 s10, s10, s11")
    a("s_lshl_b32 s11, s5, 5")
    a("s_add_u32 s10, s10, s11")
    a(f"buffer_load_dwordx4 v[64:67], v22, s[48:51], s10 offen{WQF}")
    a(f"s_add_u32 s10, s10, {7*32*8192}")
    a(f"buffer_load_dwordx4 v[68:71], v22, s[48:51], s10 offen{WQF}")
    a(f"s_add_u32 s10, s10, {7*32*8192}")
    a(f"buffer_load_dwordx4 v[72:75], v22, s[48:51], s10 offen{WQF}")
    a.lab("L_kld")
    a("s_mov_b32 s10, s9")
    for t in range(32):
        a(f"buffer_load_dwordx4 v[{KV+4*t}:{KV+3+4*t}], v4, s[40:43], s10 offen offset:{(t%4)*1024}{NT}")
        if t % 4 == 3: a("s_add_u32 s10, s10, 4096")
    a("s_cmp_ge_u32 s2, 160")
    a("s_cbranch_scc1 L_rw2")
    srd(a, 68, 24, 25, 4096*1280)
    a("s_mul_i32 s80, s2, 6554")
    a("s_lshr_b32 s80, s80, 16")
    a("s_mul_i32 s81, s80, 10")
    a("s_sub_u32 s81, s2, s81")
    a("s_lshl_b32 s82, s80, 8")
    a("s_branch L_rdone")
    a.lab("L_rw2")
    srd(a, 68, 30, 31, 1728*1280)
    a("s_sub_u32 s81, s2, 160")
    a("s_mul_i32 s80, s81, 6554")
    a("s_lshr_b32 s80, s80, 16")
    a("s_mul_i32 s82, s80, 10")
    a("s_sub_u32 s81, s81, s82")
    a("s_mul_i32 s82, s80, 192")
    a("s_add_u32 s80, s80, 16")
    a.lab("L_rdone")
    for i in range(32, 48): a(f"v_mov_b32 v{i}, 0")
    a("s_waitcnt vmcnt(32)")
    for r in range(56, 62): a(f"v_lshlrev_b32 v{r}, 16, v{r}")
    for k in range(3):
        for d in range(4):
            r = 64 + 4*k + d
            a(f"v_lshlrev_b32 v22, 16, v{r}")
            a(f"v_and_b32 v23, 0xffff0000, v{r}")
            for b in range(2):
                a(f"v_fmac_f32 v{32+8*b+2*d}, v{56+2*k+b}, v22")
                a(f"v_fmac_f32 v{33+8*b+2*d}, v{56+2*k+b}, v23")
    regs = list(range(32, 48))
    dpp_reduce(a, regs, (2, 4, 8))
    xreduce(a, regs, list(range(76, 92)))
    a("v_lshlrev_b32 v22, 6, v21")
    a("s_lshl_b32 s10, s8, 7")
    a("v_add_u32 v22, s10, v22")
    for k in range(4): a(f"ds_write_b128 v22, v[{32+4*k}:{35+4*k}] offset:{QP+16*k}")
    a("s_waitcnt lgkmcnt(0)")
    a("s_barrier")
    a("s_cmp_lg_u32 s8, 0")
    a("s_cbranch_scc1 L_qwait")
    a(f"v_mov_b32 v22, {LDS_EP}")
    a("ds_read_b32 v23, v22")
    a("s_waitcnt lgkmcnt(0)")
    a("v_readfirstlane_b32 s101, v23")
    a("v_lshrrev_b32 v20, 4, v1")
    a("v_and_b32 v20, 1, v20")
    a("v_and_b32 v21, 15, v1")
    a("v_lshrrev_b32 v22, 3, v21")
    a("v_lshlrev_b32 v22, 6, v22")
    a("v_lshl_add_u32 v22, v20, 5, v22")
    a("v_and_b32 v23, 7, v21")
    a("v_lshl_add_u32 v22, v23, 2, v22")
    for w in range(8): a(f"ds_read_b32 v{32+w}, v22 offset:{QP+128*w}")
    a("s_waitcnt lgkmcnt(0)")
    for w in range(1, 8): a(f"v_add_f32 v32, v32, v{32+w}")
    a("s_nop 1")
    a("v_mov_b32_dpp v33, v32 quad_perm:[1,0,3,2] row_mask:0xf bank_mask:0xf")
    a("v_cvt_pk_bf16_f32 v34, v32, v33")
    a("v_mov_b32 v35, s101")
    a("v_lshlrev_b32 v22, 9, v20")
    a("v_lshrrev_b32 v23, 1, v21")
    a("v_lshl_add_u32 v22, v23, 3, v22")
    a("s_lshl_b32 s10, s3, 10")
    a("s_lshl_b32 s11, s5, 6")
    a("s_add_u32 s10, s10, s11")
    a(f"s_add_u32 s10, s10, {WS_Q}")
    a("s_mov_b32 exec_lo, 0x55555555")
    a("s_mov_b32 exec_hi, 0")
    a("buffer_store_dwordx2 v[34:35], v22, s[56:59], s10 offen sc1")
    a("s_mov_b64 exec, -1")
    a("s_lshl_b32 s10, s3, 1")
    a("s_add_u32 s10, s10, s6")
    a("s_lshl_b32 s10, s10, 9")
    a(f"s_add_u32 s10, s10, {WS_Q}")
    for ch in range(4):
        a("s_mov_b32 s15, 0")
        a.lab(f"L_qc{ch}")
        a("s_load_dwordx16 s[16:31], s[38:39], s10 glc")
        a("s_add_u32 s11, s10, 64")
        a("s_load_dwordx16 s[84:99], s[38:39], s11 glc")
        a("s_waitcnt lgkmcnt(0)")
        a("s_mov_b32 s14, 0")
        for i in range(8):
            a(f"s_xor_b32 s11, s{17+2*i}, s101")
            a("s_or_b32 s14, s14, s11")
            a(f"s_xor_b32 s11, s{85+2*i}, s101")
            a("s_or_b32 s14, s14, s11")
        a("s_cmp_eq_u32 s14, 0")
        a(f"s_cbranch_scc1 L_qd{ch}")
        a("s_sleep 32" if "slow" in TST else "s_sleep 1")
        a("s_add_u32 s15, s15, 1")
        a("s_cmp_lt_u32 s15, 200000")
        a(f"s_cbranch_scc1 L_qc{ch}")
        a.lab(f"L_qd{ch}")
        for cc in range(4):
            c = 4*ch + cc
            m = 0x00010001 << c
            a(f"s_mov_b32 exec_lo, {m}")
            a(f"s_mov_b32 exec_hi, {m}")
            for d in range(4):
                i = 4*cc + d
                sreg = (16 + 2*i) if i < 8 else (84 + 2*(i-8))
                a(f"v_mov_b32 v{16+d}, s{sreg}")
        a("s_mov_b64 exec, -1")
        a("s_add_u32 s10, s10, 128")
    a("ds_write_b128 v2, v[16:19]")
    a("s_waitcnt lgkmcnt(0)")
    a.lab("L_qwait")
    a("s_barrier")
    a("ds_read_b128 v[16:19], v2")
    a("s_waitcnt lgkmcnt(0)")
    stamp(a, 1)
    a("s_mov_b32 s10, s9")
    for g4 in range(8):
        a("s_waitcnt vmcnt(28)")
        ts = [4*g4 + i for i in range(4)]
        for d in range(4):
            for t in ts:
                c = "0" if d == 0 else f"v{32+t}"
                a(f"v_dot2_f32_bf16 v{32+t}, v{KV+4*t+d}, v{16+d}, {c}")
        for t in ts:
            a(f"buffer_load_dwordx4 v[{KV+4*t}:{KV+3+4*t}], v4, s[44:47], s10 offen offset:{(t%4)*1024}{NT}")
        a("s_add_u32 s10, s10, 4096")
        for ro in (8, 4, 2, 1):
            for t in ts:
                a(f"v_add_f32_dpp v{32+t}, v{32+t}, v{32+t} row_ror:{ro} row_mask:0xf bank_mask:0xf")
        for i, t in enumerate(ts): a(f"v_cvt_pk_bf16_f32 v{20+i}, v{32+t}, v{32+t}")
        for i, t in enumerate(ts): a(f"v_lshlrev_b32 v{32+t}, 16, v{20+i}")
        for t in ts: a(f"v_mul_f32 v{32+t}, s12, v{32+t}")
        for i, t in enumerate(ts): a(f"v_cvt_pk_bf16_f32 v{20+i}, v{32+t}, v{32+t}")
        for i, t in enumerate(ts): a(f"v_lshlrev_b32 v{32+t}, 16, v{20+i}")
    stamp(a, 2)
    a("v_lshrrev_b32 v20, 3, v1")
    a("v_and_b32 v21, 7, v1")
    a("s_movk_i32 s10, 1280")
    a("v_mul_lo_u32 v22, v20, s10")
    a("v_lshl_add_u32 v22, v21, 4, v22")
    a("s_lshl_b32 s10, s8, 5")
    a("s_add_u32 s10, s10, s82")
    a("s_mul_i32 s10, s10, 1280")
    a("s_lshl_b32 s11, s81, 7")
    a("s_add_u32 s10, s10, s11")
    a("s_cmp_ge_u32 s2, 250")
    a("s_cselect_b32 s10, 0x7f000000, s10")
    for i in range(4):
        a(f"buffer_load_dwordx4 v[{64+4*i}:{67+4*i}], v22, s[68:71], s10 offen{NT}")
        a("s_add_u32 s10, s10, 10240")
    a("v_lshrrev_b32 v20, 2, v1")
    a("v_and_b32 v21, 3, v1")
    a("s_movk_i32 s10, 3456")
    a("v_mul_lo_u32 v22, v20, s10")
    a("v_lshl_add_u32 v22, v21, 4, v22")
    a("v_lshlrev_b32 v23, 1, v20")
    a("s_mul_i32 s10, s8, 80*3456")
    a(f"s_sub_u32 s11, s2, {MLP0}")
    a("s_lshl_b32 s11, s11, 6")
    a("s_add_u32 s10, s10, s11")
    a(f"s_cmp_lt_u32 s2, {MLP0}")
    a("s_cselect_b32 s10, 0x7f000000, s10")
    for i in range(5):
        a(f"buffer_load_dwordx4 v[{80+4*i}:{83+4*i}], v22, s[60:63], s10 offen{NT}")
        a(f"s_add_u32 s10, s10, {16*3456}")
    a("s_mul_i32 s10, s8, 160")
    for b in range(2):
        for i in range(5):
            a(f"buffer_load_ushort v{100+5*b+i}, v23, s[52:55], s10 offen offset:{b*1280+32*i}")
    a(f"v_mov_b32 v22, {LDS_EP}")
    a("ds_read_b32 v23, v22")
    a("s_waitcnt lgkmcnt(0)")
    a("v_readfirstlane_b32 s101, v23")
    EXTRA = 19
    a("v_max3_f32 v28, v32, v33, v34")
    for t in range(35, 63, 2): a(f"v_max3_f32 v28, v28, v{t}, v{t+1}")
    a("v_max_f32 v28, v28, v63")
    xreduce(a, [28], [20], op="v_max_f32")
    a("v_mul_f32 v29, s13, v28")
    for t in range(32): a(f"v_fma_f32 v{32+t}, v{32+t}, s13, -v29")
    for t in range(32): a(f"v_exp_f32 v{32+t}, v{32+t}")
    a("s_nop 0")
    a("v_add_f32 v30, v32, v33")
    for t in range(34, 64): a(f"v_add_f32 v30, v30, v{t}")
    xreduce(a, [30], [20])
    for i in range(8, 16): a(f"v_mov_b32 v{i}, 0")
    for t in range(32):
        a(f"s_waitcnt vmcnt({31-t+EXTRA})")
        for d in range(4):
            r = KV + 4*t + d
            a(f"v_lshlrev_b32 v22, 16, v{r}")
            a(f"v_and_b32 v23, 0xffff0000, v{r}")
            a(f"v_fmac_f32 v{8+2*d}, v{32+t}, v22")
            a(f"v_fmac_f32 v{9+2*d}, v{32+t}, v23")
    stamp(a, 3)
    xreduce(a, list(range(8, 16)), list(range(20, 28)))
    a("v_lshlrev_b32 v20, 1, v2")
    a("s_lshl_b32 s10, s8, 9")
    a("v_add_u32 v21, s10, v20")
    a("ds_write_b128 v21, v[8:11] offset:4096")
    a("ds_write_b128 v21, v[12:15] offset:4112")
    a("s_lshl_b32 s10, s8, 3")
    a("v_mov_b32 v22, s10")
    a("v_mov_b32 v29, v30")
    a("ds_write_b64 v22, v[28:29] offset:8192")
    a("s_waitcnt lgkmcnt(0)")
    a("s_barrier")
    a("s_cmp_eq_u32 s8, 0")
    a("s_cbranch_scc1 L_gate")
    a("s_cmp_lg_u32 s8, 1")
    a("s_cbranch_scc1 L_mlp")
    a("v_mov_b32 v22, 0")
    for w in range(4): a(f"ds_read_b128 v[{112+4*w}:{115+4*w}], v22 offset:{8192+16*w}")
    for w in range(8):
        a(f"ds_read_b128 v[{128+8*w}:{131+8*w}], v20 offset:{4096+w*512}")
        a(f"ds_read_b128 v[{132+8*w}:{135+8*w}], v20 offset:{4096+w*512+16}")
    a("s_waitcnt lgkmcnt(0)")
    a("v_max3_f32 v28, v112, v114, v116")
    a("v_max3_f32 v28, v28, v118, v120")
    a("v_max3_f32 v28, v28, v122, v124")
    a("v_max_f32 v28, v28, v126")
    a("v_mul_f32 v29, s13, v28")
    for w in range(8): a(f"v_fma_f32 v{112+2*w}, v{112+2*w}, s13, -v29")
    for w in range(8): a(f"v_exp_f32 v{112+2*w}, v{112+2*w}")
    a("s_nop 0")
    a("v_mul_f32 v29, v112, v113")
    for w in range(1, 8): a(f"v_fmac_f32 v29, v{112+2*w}, v{113+2*w}")
    for e in range(8): a(f"v_mul_f32 v{8+e}, v112, v{128+e}")
    for w in range(1, 8):
        for e in range(8): a(f"v_fmac_f32 v{8+e}, v{112+2*w}, v{128+8*w+e}")
    a("s_lshl_b32 s10, s6, 5")
    a("s_add_u32 s10, s10, s3")
    a("s_lshl_b32 s10, s10, 2")
    a("s_add_u32 s10, s10, s7")
    a("s_lshl_b32 s11, s10, 9")
    a("v_cmp_gt_u32 vcc, 16, v1")
    a("s_and_saveexec_b64 s[14:15], vcc")
    a("buffer_store_dwordx4 v[8:11], v20, s[56:59], s11 offen sc1")
    a("buffer_store_dwordx4 v[12:15], v20, s[56:59], s11 offen offset:16 sc1")
    a("s_lshl_b32 s11, s10, 3")
    a(f"s_add_u32 s11, s11, {WS_ML}")
    a("v_mov_b32 v22, 0")
    a("s_mov_b64 exec, 1")
    a("buffer_store_dwordx2 v[28:29], v22, s[56:59], s11 offen sc1")
    a("s_mov_b64 exec, s[14:15]")
    a("s_waitcnt vmcnt(0)")
    a("v_mov_b32 v24, s101")
    a("s_lshl_b32 s11, s10, 7")
    a(f"s_add_u32 s11, s11, {WS_FLAG}")
    setflag(a, "s11", 24)
    stamp(a, 4)
    a("s_branch L_mlp")
    a.lab("L_gate")
    a("v_lshlrev_b32 v9, 2, v1")
    for k in range(5):
        a(f"buffer_load_dword v{200+k}, v9, s[52:55], 0 offen offset:{256*k}")
        a(f"buffer_load_dword v{205+k}, v9, s[52:55], 0 offen offset:{1280+256*k}")
        a(f"buffer_load_dword v{210+k}, v9, s[72:75], 0 offen offset:{256*k}")
    a("s_waitcnt vmcnt(0)")
    a("v_mov_b32 v216, 0")
    a("v_mov_b32 v217, 0")
    for k in range(5):
        for half in range(2):
            if half == 0:
                a(f"v_lshlrev_b32 v218, 16, v{210+k}")
                a(f"v_lshlrev_b32 v219, 16, v{200+k}")
                a(f"v_lshlrev_b32 v220, 16, v{205+k}")
            else:
                a(f"v_and_b32 v218, 0xffff0000, v{210+k}")
                a(f"v_and_b32 v219, 0xffff0000, v{200+k}")
                a(f"v_and_b32 v220, 0xffff0000, v{205+k}")
            a("v_mul_f32 v219, v219, v218")
            a("v_mul_f32 v220, v220, v218")
            rnd_bf16(a, 219, 221)
            rnd_bf16(a, 220, 221)
            a("v_add_f32 v216, v216, v219")
            a("v_add_f32 v217, v217, v220")
    dpp_reduce(a, [216, 217], (8, 4, 2, 1))
    xreduce(a, [216, 217], [218, 219])
    rnd_bf16(a, 216, 218)
    rnd_bf16(a, 217, 218)
    for r in (216, 217):
        a(f"v_mul_f32 v218, s13, v{r}")
        a("v_exp_f32 v218, -v218")
        a("s_nop 0")
        a("v_add_f32 v218, 1.0, v218")
        a(f"v_rcp_f32 v{r}, v218")
        a("s_nop 0")
        rnd_bf16(a, r, 218)
    a("v_mov_b32 v110, v216")
    a("v_mov_b32 v111, v217")
    a.lab("L_mlp")
    a("s_waitcnt vmcnt(0)")
    a(f"s_cmp_lt_u32 s2, {MLP0}")
    a("s_cbranch_scc1 L_b1")
    for i in range(112, 128): a(f"v_mov_b32 v{i}, 0")
    for i in range(100, 110): a(f"v_lshlrev_b32 v{i}, 16, v{i}")
    for i in range(5):
        for d in range(4):
            r = 80 + 4*i + d
            a(f"v_lshlrev_b32 v24, 16, v{r}")
            a(f"v_and_b32 v25, 0xffff0000, v{r}")
            for b in range(2):
                a(f"v_fmac_f32 v{112+8*b+2*d}, v{100+5*b+i}, v24")
                a(f"v_fmac_f32 v{113+8*b+2*d}, v{100+5*b+i}, v25")
    regs = list(range(112, 128))
    dpp_reduce(a, regs, (4, 8))
    xreduce(a, regs, list(range(128, 144)))
    a("v_and_b32 v21, 3, v1")
    a("s_lshl_b32 s10, s8, 8")
    a("v_lshlrev_b32 v24, 6, v21")
    a("v_add_u32 v24, s10, v24")
    for k in range(4): a(f"ds_write_b128 v24, v[{112+4*k}:{115+4*k}] offset:{12288+16*k}")
    a("s_waitcnt lgkmcnt(0)")
    a("s_barrier")
    a("s_cmp_lg_u32 s8, 2")
    a("s_cbranch_scc1 L_b1")
    a("v_lshrrev_b32 v20, 5, v1")
    a("v_and_b32 v21, 31, v1")
    a("v_lshrrev_b32 v22, 3, v21")
    a("v_lshlrev_b32 v22, 6, v22")
    a("v_lshl_add_u32 v22, v20, 5, v22")
    a("v_and_b32 v23, 7, v21")
    a("v_lshl_add_u32 v22, v23, 2, v22")
    for w in range(8): a(f"ds_read_b32 v{112+w}, v22 offset:{12288+256*w}")
    a("s_waitcnt lgkmcnt(0)")
    for w in range(1, 8): a(f"v_add_f32 v112, v112, v{112+w}")
    rnd_bf16(a, 112, 113)
    a("v_mul_f32 v113, s13, v112")
    a("v_exp_f32 v113, -v113")
    a("s_nop 0")
    a("v_add_f32 v113, 1.0, v113")
    a("v_rcp_f32 v113, v113")
    a("s_nop 0")
    a("v_mul_f32 v112, v112, v113")
    rnd_bf16(a, 112, 113)
    a("s_movk_i32 s10, 1728*4")
    a("v_mul_lo_u32 v22, v20, s10")
    a("v_lshl_add_u32 v22, v21, 2, v22")
    a(f"s_sub_u32 s11, s2, {MLP0}")
    a("s_lshl_b32 s11, s11, 7")
    a(f"s_add_u32 s11, s11, {WS_H}")
    a("buffer_store_dword v112, v22, s[56:59], s11 offen sc1")
    a("s_waitcnt vmcnt(0)")
    a("v_mov_b32 v24, s101")
    a(f"s_sub_u32 s11, s2, {MLP0}")
    a("s_lshl_b32 s11, s11, 7")
    a(f"s_add_u32 s11, s11, {WS_FLAG + 0x8000}")
    setflag(a, "s11", 24)
    a.lab("L_b1")
    a("s_cmp_ge_u32 s2, 250")
    a("s_cbranch_scc1 L_end")
    a("s_cmp_lg_u32 s8, 0")
    a("s_cbranch_scc1 L_b1w")
    a("s_cmp_ge_u32 s2, 160")
    a("s_cbranch_scc1 L_pmlp")
    a("v_mov_b32 v24, s101")
    a("v_lshrrev_b32 v20, 3, v1")
    a("v_and_b32 v20, 1, v20")
    a("v_lshrrev_b32 v21, 2, v1")
    a("v_and_b32 v21, 1, v21")
    a("v_and_b32 v22, 3, v1")
    a("s_lshl_b32 s11, s80, 1")
    a("v_add_u32 v20, s11, v20")
    a("v_lshl_add_u32 v22, v20, 2, v22")
    a("v_lshl_add_u32 v22, v21, 7, v22")
    a("v_lshlrev_b32 v22, 7, v22")
    a("s_waitcnt lgkmcnt(0)")
    pollf(a, 22, 24)
    a("s_branch L_b1w")
    a.lab("L_pmlp")
    a("v_mov_b32 v24, s101")
    a("v_min_u32 v22, 5, v1")
    a("s_sub_u32 s11, s80, 16")
    a("s_mul_i32 s11, s11, 6")
    a("v_add_u32 v22, s11, v22")
    a("v_lshlrev_b32 v22, 7, v22")
    a("v_add_u32 v22, 0x8000, v22")
    a("s_waitcnt lgkmcnt(0)")
    pollf(a, 22, 24)
    a.lab("L_b1w")
    stamp(a, 5)
    a("s_barrier")
    a("v_lshlrev_b32 v5, 2, v0")
    a("s_cmp_ge_u32 s8, 4")
    a("s_cbranch_scc1 L_s2")
    a("s_cmp_ge_u32 s2, 160")
    a("s_cbranch_scc1 L_s1h")
    a("v_lshrrev_b32 v6, 7, v0")
    a("v_and_b32 v7, 127, v0")
    a("v_lshlrev_b32 v7, 2, v7")
    a("v_lshl_add_u32 v7, v6, 11, v7")
    a("v_lshlrev_b32 v6, 5, v6")
    a("s_lshl_b32 s10, s80, 12")
    for b in range(2):
        for s in range(4):
            a(f"buffer_load_dword v{32+4*b+s}, v7, s[56:59], s10 offen offset:{s*512} sc1")
        if b == 0: a("s_add_u32 s10, s10, 65536")
    a("s_lshl_b32 s10, s80, 6")
    a(f"s_add_u32 s10, s10, {WS_ML}")
    for b in range(2):
        a(f"buffer_load_dwordx4 v[{40+8*b}:{43+8*b}], v6, s[56:59], s10 offen offset:{b*1024} sc1")
        a(f"buffer_load_dwordx4 v[{44+8*b}:{47+8*b}], v6, s[56:59], s10 offen offset:{b*1024+16} sc1")
    a("s_waitcnt vmcnt(0)")
    for b in range(2):
        ml = 40 + 8*b; P = 32 + 4*b
        a(f"v_max3_f32 v20, v{ml}, v{ml+2}, v{ml+4}")
        a(f"v_max_f32 v20, v20, v{ml+6}")
        a("v_mul_f32 v20, s13, v20")
        for s in range(4): a(f"v_fma_f32 v{ml+2*s}, v{ml+2*s}, s13, -v20")
        for s in range(4): a(f"v_exp_f32 v{ml+2*s}, v{ml+2*s}")
        a("s_nop 0")
        a(f"v_mul_f32 v21, v{ml}, v{ml+1}")
        for s in range(1, 4): a(f"v_fmac_f32 v21, v{ml+2*s}, v{ml+2*s+1}")
        a("v_rcp_f32 v21, v21")
        a(f"v_mul_f32 v{P}, v{ml}, v{P}")
        for s in range(1, 4): a(f"v_fmac_f32 v{P}, v{ml+2*s}, v{P+s}")
        a(f"v_mul_f32 v{P}, v{P}, v21")
        rnd_bf16(a, P, 22)
    a("ds_write_b32 v5, v32 offset:16384")
    a("ds_write_b32 v5, v36 offset:17408")
    a("s_branch L_s2")
    a.lab("L_s1h")
    a("s_lshl_b32 s10, s82, 2")
    a(f"s_add_u32 s10, s10, {WS_H}")
    a("buffer_load_dword v32, v5, s[56:59], s10 offen sc1")
    a(f"s_add_u32 s10, s10, {1728*4}")
    a("buffer_load_dword v36, v5, s[56:59], s10 offen sc1")
    a("v_cmp_gt_u32 vcc, 192, v0")
    a("s_waitcnt vmcnt(0)")
    a("v_cndmask_b32 v32, 0, v32, vcc")
    a("v_cndmask_b32 v36, 0, v36, vcc")
    a("ds_write_b32 v5, v32 offset:16384")
    a("ds_write_b32 v5, v36 offset:17408")
    a.lab("L_s2")
    a("s_waitcnt lgkmcnt(0)")
    a("s_barrier")
    a("v_lshrrev_b32 v2, 3, v1")
    a("v_and_b32 v3, 7, v1")
    a("s_lshl_b32 s10, s8, 7")
    a("v_lshlrev_b32 v6, 2, v2")
    a("v_add_u32 v6, s10, v6")
    for i in range(4):
        a(f"ds_read_b32 v{32+2*i}, v6 offset:{16384+32*i}")
        a(f"ds_read_b32 v{33+2*i}, v6 offset:{17408+32*i}")
    for r in range(112, 128): a(f"v_mov_b32 v{r}, 0")
    a("s_waitcnt lgkmcnt(0)")
    for i in range(4):
        for d in range(4):
            r = 64 + 4*i + d
            a(f"v_lshlrev_b32 v20, 16, v{r}")
            a(f"v_and_b32 v21, 0xffff0000, v{r}")
            for b in range(2):
                a(f"v_fmac_f32 v{112+8*b+2*d}, v{32+2*i+b}, v20")
                a(f"v_fmac_f32 v{113+8*b+2*d}, v{32+2*i+b}, v21")
    regs = list(range(112, 128))
    dpp_reduce(a, regs, (8,))
    xreduce(a, regs, list(range(128, 144)))
    a("s_lshl_b32 s10, s8, 9")
    a("v_lshlrev_b32 v6, 6, v3")
    a("v_add_u32 v6, s10, v6")
    for k in range(4): a(f"ds_write_b128 v6, v[{112+4*k}:{115+4*k}] offset:{18432+16*k}")
    a("s_waitcnt lgkmcnt(0)")
    a("s_barrier")
    a("s_cmp_lg_u32 s8, 0")
    a("s_cbranch_scc1 L_end")
    a("v_lshlrev_b32 v6, 6, v2")
    a("v_lshl_add_u32 v6, v3, 2, v6")
    for w in range(8):
        a(f"ds_read_b32 v{32+w}, v6 offset:{18432+512*w}")
        a(f"ds_read_b32 v{40+w}, v6 offset:{18432+512*w+32}")
    a("s_waitcnt lgkmcnt(0)")
    for w in range(1, 8):
        a(f"v_add_f32 v32, v32, v{32+w}")
        a(f"v_add_f32 v40, v40, v{40+w}")
    a("s_mul_i32 s10, s80, 5120")
    a("s_lshl_b32 s11, s81, 8")
    a("s_add_u32 s10, s10, s11")
    a(f"s_add_u32 s10, s10, {WS_PART}")
    a("v_lshlrev_b32 v6, 2, v1")
    a("buffer_store_dword v32, v6, s[56:59], s10 offen sc1")
    a("buffer_store_dword v40, v6, s[56:59], s10 offen offset:2560 sc1")
    a("s_waitcnt vmcnt(0)")
    a("s_lshl_b32 s11, s81, 2")
    a(f"s_add_u32 s11, s11, {CT_NB}")
    signal(a, "s11", ret=True)
    a("s_waitcnt vmcnt(0)")
    a("v_readfirstlane_b32 s14, v29")
    stamp(a, 6)
    a("s_cmp_lg_u32 s14, 24")
    a("s_cbranch_scc1 L_end")
    a("s_lshl_b32 s10, s81, 8")
    a(f"s_add_u32 s10, s10, {WS_PART}")
    for kb in range(25):
        a(f"buffer_load_dword v{112+kb}, v6, s[56:59], s10 offen sc1")
        a(f"buffer_load_dword v{144+kb}, v6, s[56:59], s10 offen offset:2560 sc1")
        a("s_add_u32 s10, s10, 5120")
    a("s_waitcnt vmcnt(0)")
    for base, g in ((112, 110), (144, 111)):
        for kb in range(1, 16): a(f"v_add_f32 v{base}, v{base}, v{base+kb}")
        for kb in range(17, 25): a(f"v_add_f32 v{base+16}, v{base+16}, v{base+kb}")
        rnd_bf16(a, base, 22)
        rnd_bf16(a, base+16, 22)
        a(f"v_mul_f32 v24, v{g}, v{base}")
        rnd_bf16(a, 24, 22)
        a(f"v_sub_f32 v25, 1.0, v{g}")
        rnd_bf16(a, 25, 22)
        a(f"v_mul_f32 v25, v25, v{base+16}")
        rnd_bf16(a, 25, 22)
        a("v_add_f32 v24, v24, v25")
        a(f"v_cvt_pk_bf16_f32 v{base}, v24, v24")
    a("v_lshlrev_b32 v25, 1, v1")
    a("s_lshl_b32 s10, s81, 7")
    a("buffer_store_short v112, v25, s[76:79], s10 offen")
    a("buffer_store_short v144, v25, s[76:79], s10 offen offset:1280")
    stamp(a, 7)
    a.lab("L_end")
    a("s_endpgm")

def main():
    a = A()
    hdr = open(f"cdna_kernels/{NAME}.s.ref").read().split("; Override launch")[0]
    a.raw(hdr.rstrip())
    a.raw("; @launch grid=(256,1,1) block=(512,1,1) lds=24576")
    a.raw('.amdgcn_target "amdgcn-amd-amdhsa--gfx950"')
    a.raw(".text")
    kernel(a)
    a.raw('.section .rodata,"a"')
    a.raw(f""".p2align 6
.amdhsa_kernel {NAME}_kernel
  .amdhsa_next_free_vgpr 256
  .amdhsa_next_free_sgpr 102
  .amdhsa_accum_offset 256
  .amdhsa_group_segment_fixed_size 0
  .amdhsa_kernarg_size 96
  .amdhsa_user_sgpr_count 2
  .amdhsa_user_sgpr_kernarg_segment_ptr 1
  .amdhsa_system_sgpr_workgroup_id_x 1
.end_amdhsa_kernel
""")
    out = sys.argv[1] if len(sys.argv) > 1 else f"cdna_kernels/{NAME}.s"
    open(out, "w").write(a.text())
main()
```

```python
import sys, os
NAME = "gated_mix__mha_block_cached__dense_activation_silu__decode"
NT = " nt"
DIAG = os.environ.get("DIAG", "0") == "1"
MLP0 = 202
SPOLL = os.environ.get("SPOLL","0")=="1"
SLEEP = os.environ.get("SLEEP","2")
MAP = os.environ.get("MAP","0")
TST = os.environ.get("TST","")
K1 = int(os.environ.get("K1","8"))
WQF = os.environ.get("WQF"," nt")

class A:
    def __init__(s): s.l = []
    def __call__(s, x): s.l.append("    " + x)
    def lab(s, x): s.l.append(x + ":")
    def raw(s, x): s.l.append(x)
    def text(s): return "\n".join(s.l) + "\n"

LOG2E = 0x3fb8aa3b
SCALE = 0x3db504f3
WS_OPART = 0
WS_ML    = 0x20000
WS_H     = 0x40000
WS_PART  = 0x90000
WS_DIAG  = 0xC0000
WS_FLAG  = 0xB0000
WS_Q = 0x50000
QP = 12288
OP2 = 0x100000
H2 = 0x180000
PART2 = 0x190000
LDS_EP = 20480
KV = 112
CT_HEAD = 0
CT_MLP = 128
CT_NB = 160

def stamp(a, idx):
    if not DIAG: return
    a("s_memrealtime s[90:91]")
    a("s_waitcnt lgkmcnt(0)")
    a("s_lshl_b32 s92, s2, 8")
    a("s_lshl_b32 s93, s8, 5")
    a("s_add_u32 s92, s92, s93")
    a(f"s_add_u32 s92, s92, {WS_DIAG + idx*4}")
    a("v_mov_b32 v26, s90")
    a("v_mov_b32 v27, 0")
    a("s_mov_b64 s[94:95], exec")
    a("s_mov_b64 exec, 1")
    a("buffer_store_dword v26, v27, s[56:59], s92 offen")
    a("s_mov_b64 exec, s[94:95]")

def srd(a, d, lo, hi, nbytes):
    a(f"s_mov_b32 s{d}, s{lo}")
    a(f"s_and_b32 s{d+1}, s{hi}, 0xffff")
    a(f"s_mov_b32 s{d+2}, {nbytes}")
    a(f"s_mov_b32 s{d+3}, 0x00020000")

def rnd_bf16(a, v, tmp):
    a(f"v_cvt_pk_bf16_f32 v{tmp}, v{v}, v{v}")
    a(f"v_lshlrev_b32 v{v}, 16, v{tmp}")

def xreduce(a, regs, tmp, op="v_add_f32"):
    for sw in ("v_permlane16_swap_b32", "v_permlane32_swap_b32"):
        for r, t in zip(regs, tmp): a(f"v_mov_b32 v{t}, v{r}")
        a("s_nop 1")
        for r, t in zip(regs, tmp): a(f"{sw} v{r}, v{t}")
        a("s_nop 1")
        for r, t in zip(regs, tmp): a(f"{op} v{r}, v{r}, v{t}")

def dpp_reduce(a, regs, rors):
    a("s_nop 1")
    for ro in rors:
        for r in regs:
            a(f"v_add_f32_dpp v{r}, v{r}, v{r} row_ror:{ro} row_mask:0xf bank_mask:0xf")
        if len(regs) < 3: a("s_nop 1")

_lab = [0]
def poll(a, off_sreg, target):
    _lab[0] += 1
    L = f"Lpoll{_lab[0]}"
    a("v_mov_b32 v30, 0")
    a("s_mov_b32 s15, 0")
    a.lab(L)
    if SPOLL:
        a(f"s_load_dword s14, s[36:37], {off_sreg} glc")
        a("s_waitcnt lgkmcnt(0)")
    else:
        a(f"buffer_load_dword v29, v30, s[64:67], {off_sreg} offen sc1")
        a("s_waitcnt vmcnt(0)")
        a("v_readfirstlane_b32 s14, v29")
    a(f"s_cmp_ge_u32 s14, {target}")
    a(f"s_cbranch_scc1 {L}d")
    a(f"s_sleep {SLEEP}")
    a("s_add_u32 s15, s15, 1")
    a("s_cmp_lt_u32 s15, 200000")
    a(f"s_cbranch_scc1 {L}")
    a.lab(L + "d")

def pollf(a, vaddr, vep):
    _lab[0] += 1
    L = f"Lpf{_lab[0]}"
    a("s_mov_b32 s15, 0")
    a(f"s_mov_b32 s14, {WS_FLAG}")
    a.lab(L)
    a(f"buffer_load_dword v29, v{vaddr}, s[56:59], s14 offen sc1")
    a("s_waitcnt vmcnt(0)")
    a(f"v_cmp_ne_u32 vcc, v29, v{vep}")
    a("s_nop 4")
    a(f"s_cbranch_vccz {L}d")
    a(f"s_sleep {SLEEP}")
    a("s_add_u32 s15, s15, 1")
    a("s_cmp_lt_u32 s15, 200000")
    a(f"s_cbranch_scc1 {L}")
    a.lab(L + "d")

def setflag(a, off_sreg, vep):
    a("s_mov_b64 s[14:15], exec")
    a("s_mov_b64 exec, 1")
    a("v_mov_b32 v30, 0")
    a(f"buffer_store_dword v{vep}, v30, s[56:59], {off_sreg} offen sc1")
    a("s_mov_b64 exec, s[14:15]")

def signal(a, off_sreg, ret=False):
    a("s_mov_b64 s[14:15], exec")
    a("s_mov_b64 exec, 1")
    a("v_mov_b32 v29, 1")
    a("v_mov_b32 v30, 0")
    a(f"buffer_atomic_add v29, v30, s[64:67], {off_sreg} offen{' sc0' if ret else ''} sc1")
    a("s_mov_b64 exec, s[14:15]")

def kernel(a):
    K = NAME + "_kernel"
    a.raw(f".globl {K}\n.p2align 8\n.type {K},@function")
    a.lab(K)
    a("s_cmp_ge_u32 s2, 256")
    a("s_cbranch_scc1 L_end")
    a("s_load_dwordx16 s[16:31], s[0:1], 0")
    a("s_load_dwordx8 s[32:39], s[0:1], 64")
    a("s_and_b32 s3, s2, 7")
    a("s_lshl_b32 s3, s3, 2")
    a("s_lshr_b32 s4, s2, 3")
    a("s_and_b32 s4, s4, 3")
    a("s_add_u32 s3, s3, s4")
    a("s_lshr_b32 s5, s2, 5")
    if MAP == "1":
        a("s_lshr_b32 s3, s2, 3")
        a("s_and_b32 s5, s2, 7")
    a("s_lshr_b32 s6, s5, 2")
    a("s_and_b32 s7, s5, 3")
    a("v_lshrrev_b32 v20, 6, v0")
    a("v_and_b32 v1, 63, v0")
    a("v_readfirstlane_b32 s8, v20")
    a("v_and_b32 v2, 15, v1")
    a("v_lshlrev_b32 v2, 4, v2")
    a("v_lshrrev_b32 v3, 4, v1")
    a("v_lshlrev_b32 v4, 4, v1")
    a("v_lshl_add_u32 v5, v3, 13, v2")
    a("v_and_b32 v20, 15, v1")
    a("v_lshl_add_u32 v20, v20, 2, v3")
    a("v_lshlrev_b32 v20, 1, v20")
    a(f"s_mov_b32 s12, {SCALE}")
    a(f"s_mov_b32 s13, {LOG2E}")
    a("s_waitcnt lgkmcnt(0)")
    srd(a, 40, 18, 19, 0x4000000)
    srd(a, 44, 20, 21, 0x4000000)
    srd(a, 48, 22, 23, 640*8192)
    srd(a, 52, 16, 17, 2560)
    srd(a, 56, 38, 39, 0x200000)
    srd(a, 60, 28, 29, 640*3456)
    srd(a, 64, 36, 37, 256)
    srd(a, 72, 32, 33, 1280)
    srd(a, 76, 34, 35, 2560)
    stamp(a, 0)
    a("s_lshl_b32 s9, s6, 5")
    a("s_add_u32 s9, s9, s3")
    a("s_lshl_b32 s9, s9, 20")
    a("s_lshl_b32 s10, s7, 18")
    a("s_add_u32 s9, s9, s10")
    a("s_lshl_b32 s10, s8, 15")
    a("s_add_u32 s9, s9, s10")
    a("v_lshrrev_b32 v20, 1, v1")
    a("v_and_b32 v21, 1, v1")
    a("s_cmp_lg_u32 s8, 7")
    a("s_cbranch_scc1 L_qld")
    a("s_memrealtime s[100:101]")
    a("s_waitcnt lgkmcnt(0)")
    a("s_or_b32 s100, s100, 1")
    a("v_mov_b32 v6, s100")
    a("v_mov_b32 v7, 0")
    a("v_mov_b32 v22, 0")
    a("s_movk_i32 s11, 240")
    a("s_mov_b64 exec, 1")
    a("buffer_atomic_cmpswap v[6:7], v22, s[64:67], s11 offen sc0 sc1")
    a("s_mov_b64 exec, -1")
    a("s_waitcnt vmcnt(0)")
    a("v_readfirstlane_b32 s101, v6")
    a("s_cmp_eq_u32 s101, 0")
    a("s_cselect_b32 s101, s100, s101")
    a("v_mov_b32 v6, s101")
    a(f"v_mov_b32 v22, {LDS_EP}")
    a("ds_write_b32 v22, v6")
    for r in list(range(56, 62)) + list(range(64, 76)): a(f"v_mov_b32 v{r}, 0")
    a("s_branch L_kld")
    a.lab("L_qld")
    a("v_lshlrev_b32 v22, 13, v20")
    a("v_lshl_add_u32 v22, v21, 4, v22")
    if "nowq" in TST: a("v_lshlrev_b32 v22, 4, v21")
    a("v_lshlrev_b32 v23, 1, v20")
    a("s_lshl_b32 s10, s8, 6")
    for k in range(3):
        for b in range(2):
            a(f"buffer_load_ushort v{56+2*k+b}, v23, s[52:55], s10 offen offset:{b*1280 + 448*k}")
    a("s_lshl_b32 s10, s8, 18")
    a("s_lshl_b32 s11, s3, 8")
    a("s_add_u32 s10, s10, s11")
    a("s_lshl_b32 s11, s5, 5")
    a("s_add_u32 s10, s10, s11")
    a(f"buffer_load_dwordx4 v[64:67], v22, s[48:51], s10 offen{WQF}")
    a(f"s_add_u32 s10, s10, {7*32*8192}")
    a(f"buffer_load_dwordx4 v[68:71], v22, s[48:51], s10 offen{WQF}")
    a(f"s_add_u32 s10, s10, {7*32*8192}")
    a(f"buffer_load_dwordx4 v[72:75], v22, s[48:51], s10 offen{WQF}")
    a.lab("L_kld")
    a("s_mov_b32 s10, s9")
    for t in range(K1):
        a(f"buffer_load_dwordx4 v[{KV+4*t}:{KV+3+4*t}], v4, s[40:43], s10 offen offset:{(t%4)*1024}{NT}")
        if t % 4 == 3: a("s_add_u32 s10, s10, 4096")
    a("s_cmp_ge_u32 s2, 160")
    a("s_cbranch_scc1 L_rw2")
    srd(a, 68, 24, 25, 4096*1280)
    a("s_mul_i32 s80, s2, 6554")
    a("s_lshr_b32 s80, s80, 16")
    a("s_mul_i32 s81, s80, 10")
    a("s_sub_u32 s81, s2, s81")
    a("s_lshl_b32 s82, s80, 8")
    a("s_branch L_rdone")
    a.lab("L_rw2")
    srd(a, 68, 30, 31, 1728*1280)
    a("s_sub_u32 s81, s2, 160")
    a("s_mul_i32 s80, s81, 6554")
    a("s_lshr_b32 s80, s80, 16")
    a("s_mul_i32 s82, s80, 10")
    a("s_sub_u32 s81, s81, s82")
    a("s_mul_i32 s82, s80, 192")
    a("s_add_u32 s80, s80, 16")
    a.lab("L_rdone")
    for i in range(32, 48): a(f"v_mov_b32 v{i}, 0")
    a(f"s_waitcnt vmcnt({K1})")
    for r in range(56, 62): a(f"v_lshlrev_b32 v{r}, 16, v{r}")
    for k in range(3):
        for d in range(4):
            r = 64 + 4*k + d
            a(f"v_lshlrev_b32 v22, 16, v{r}")
            a(f"v_and_b32 v23, 0xffff0000, v{r}")
            for b in range(2):
                a(f"v_fmac_f32 v{32+8*b+2*d}, v{56+2*k+b}, v22")
                a(f"v_fmac_f32 v{33+8*b+2*d}, v{56+2*k+b}, v23")
    regs = list(range(32, 48))
    dpp_reduce(a, regs, (2, 4, 8))
    xreduce(a, regs, list(range(76, 92)))
    a("v_lshlrev_b32 v22, 6, v21")
    a("s_lshl_b32 s10, s8, 7")
    a("v_add_u32 v22, s10, v22")
    for k in range(4): a(f"ds_write_b128 v22, v[{32+4*k}:{35+4*k}] offset:{QP+16*k}")
    a("s_waitcnt lgkmcnt(0)")
    a("s_barrier")
    a("s_cmp_lg_u32 s8, 0")
    a("s_cbranch_scc1 L_q1b")
    a(f"v_mov_b32 v22, {LDS_EP}")
    a("ds_read_b32 v23, v22")
    a("s_waitcnt lgkmcnt(0)")
    a("v_readfirstlane_b32 s101, v23")
    a("v_lshrrev_b32 v20, 4, v1")
    a("v_and_b32 v20, 1, v20")
    a("v_and_b32 v21, 15, v1")
    a("v_lshrrev_b32 v22, 3, v21")
    a("v_lshlrev_b32 v22, 6, v22")
    a("v_lshl_add_u32 v22, v20, 5, v22")
    a("v_and_b32 v23, 7, v21")
    a("v_lshl_add_u32 v22, v23, 2, v22")
    for w in range(8): a(f"ds_read_b32 v{32+w}, v22 offset:{QP+128*w}")
    a("s_waitcnt lgkmcnt(0)")
    for w in range(1, 8): a(f"v_add_f32 v32, v32, v{32+w}")
    a("s_nop 1")
    a("v_mov_b32_dpp v33, v32 quad_perm:[1,0,3,2] row_mask:0xf bank_mask:0xf")
    a("v_cvt_pk_bf16_f32 v34, v32, v33")
    a("v_mov_b32 v35, s101")
    a("v_lshlrev_b32 v22, 9, v20")
    a("v_lshrrev_b32 v23, 1, v21")
    a("v_lshl_add_u32 v22, v23, 3, v22")
    a("s_lshl_b32 s10, s3, 10")
    a("s_lshl_b32 s11, s5, 6")
    a("s_add_u32 s10, s10, s11")
    a(f"s_add_u32 s10, s10, {WS_Q}")
    a("s_mov_b32 exec_lo, 0x55555555")
    a("s_mov_b32 exec_hi, 0")
    a("buffer_store_dwordx2 v[34:35], v22, s[56:59], s10 offen sc1")
    a("s_mov_b64 exec, -1")
    a.lab("L_q1b")
    a("s_barrier")
    a(f"s_add_u32 s10, s9, {K1*1024}")
    for t in range(K1, 32):
        a(f"buffer_load_dwordx4 v[{KV+4*t}:{KV+3+4*t}], v4, s[40:43], s10 offen offset:{(t%4)*1024}{NT}")
        if t % 4 == 3: a("s_add_u32 s10, s10, 4096")
    a("s_cmp_lg_u32 s8, 0")
    a("s_cbranch_scc1 L_qwait")
    a("s_lshl_b32 s10, s3, 1")
    a("s_add_u32 s10, s10, s6")
    a("s_lshl_b32 s10, s10, 9")
    a(f"s_add_u32 s10, s10, {WS_Q}")
    for ch in range(4):
        a("s_mov_b32 s15, 0")
        a.lab(f"L_qc{ch}")
        a("s_load_dwordx16 s[16:31], s[38:39], s10 glc")
        a("s_add_u32 s11, s10, 64")
        a("s_load_dwordx16 s[84:99], s[38:39], s11 glc")
        a("s_waitcnt lgkmcnt(0)")
        a("s_mov_b32 s14, 0")
        for i in range(8):
            a(f"s_xor_b32 s11, s{17+2*i}, s101")
            a("s_or_b32 s14, s14, s11")
            a(f"s_xor_b32 s11, s{85+2*i}, s101")
            a("s_or_b32 s14, s14, s11")
        a("s_cmp_eq_u32 s14, 0")
        a(f"s_cbranch_scc1 L_qd{ch}")
        a("s_sleep 32" if "slow" in TST else "s_sleep 1")
        a("s_add_u32 s15, s15, 1")
        a("s_cmp_lt_u32 s15, 200000")
        a(f"s_cbranch_scc1 L_qc{ch}")
        a.lab(f"L_qd{ch}")
        for cc in range(4):
            c = 4*ch + cc
            m = 0x00010001 << c
            a(f"s_mov_b32 exec_lo, {m}")
            a(f"s_mov_b32 exec_hi, {m}")
            for d in range(4):
                i = 4*cc + d
                sreg = (16 + 2*i) if i < 8 else (84 + 2*(i-8))
                a(f"v_mov_b32 v{16+d}, s{sreg}")
        a("s_mov_b64 exec, -1")
        a("s_add_u32 s10, s10, 128")
    a("ds_write_b128 v2, v[16:19]")
    a("s_waitcnt lgkmcnt(0)")
    a.lab("L_qwait")
    a("s_barrier")
    a("ds_read_b128 v[16:19], v2")
    a("s_waitcnt lgkmcnt(0)")
    stamp(a, 1)
    a("s_mov_b32 s10, s9")
    for g4 in range(8):
        a("s_waitcnt vmcnt(28)")
        ts = [4*g4 + i for i in range(4)]
        for d in range(4):
            for t in ts:
                c = "0" if d == 0 else f"v{32+t}"
                a(f"v_dot2_f32_bf16 v{32+t}, v{KV+4*t+d}, v{16+d}, {c}")
        for t in ts:
            a(f"buffer_load_dwordx4 v[{KV+4*t}:{KV+3+4*t}], v4, s[44:47], s10 offen offset:{(t%4)*1024}{NT}")
        a("s_add_u32 s10, s10, 4096")
        for ro in (8, 4, 2, 1):
            for t in ts:
                a(f"v_add_f32_dpp v{32+t}, v{32+t}, v{32+t} row_ror:{ro} row_mask:0xf bank_mask:0xf")
        for i, t in enumerate(ts): a(f"v_cvt_pk_bf16_f32 v{20+i}, v{32+t}, v{32+t}")
        for i, t in enumerate(ts): a(f"v_lshlrev_b32 v{32+t}, 16, v{20+i}")
        for t in ts: a(f"v_mul_f32 v{32+t}, s12, v{32+t}")
        for i, t in enumerate(ts): a(f"v_cvt_pk_bf16_f32 v{20+i}, v{32+t}, v{32+t}")
        for i, t in enumerate(ts): a(f"v_lshlrev_b32 v{32+t}, 16, v{20+i}")
    stamp(a, 2)
    a("v_lshrrev_b32 v20, 3, v1")
    a("v_and_b32 v21, 7, v1")
    a("s_movk_i32 s10, 1280")
    a("v_mul_lo_u32 v22, v20, s10")
    a("v_lshl_add_u32 v22, v21, 4, v22")
    a("s_lshl_b32 s10, s8, 5")
    a("s_add_u32 s10, s10, s82")
    a("s_mul_i32 s10, s10, 1280")
    a("s_lshl_b32 s11, s81, 7")
    a("s_add_u32 s10, s10, s11")
    a("s_cmp_ge_u32 s2, %d" % (0 if "nopre" in TST else 250))
    a("s_cselect_b32 s10, 0x7f000000, s10")
    for i in range(4):
        a(f"buffer_load_dwordx4 v[{64+4*i}:{67+4*i}], v22, s[68:71], s10 offen{NT}")
        a("s_add_u32 s10, s10, 10240")
    a("v_lshrrev_b32 v20, 2, v1")
    a("v_and_b32 v21, 3, v1")
    a("s_movk_i32 s10, 3456")
    a("v_mul_lo_u32 v22, v20, s10")
    a("v_lshl_add_u32 v22, v21, 4, v22")
    a("v_lshlrev_b32 v23, 1, v20")
    a("s_mul_i32 s10, s8, 80*3456")
    a(f"s_sub_u32 s11, s2, {MLP0}")
    a("s_lshl_b32 s11, s11, 6")
    a("s_add_u32 s10, s10, s11")
    a(f"s_cmp_lt_u32 s2, {256 if 'nopre' in TST else MLP0}")
    a("s_cselect_b32 s10, 0x7f000000, s10")
    for i in range(5):
        a(f"buffer_load_dwordx4 v[{80+4*i}:{83+4*i}], v22, s[60:63], s10 offen{NT}")
        a(f"s_add_u32 s10, s10, {16*3456}")
    a("s_mul_i32 s10, s8, 160")
    for b in range(2):
        for i in range(5):
            a(f"buffer_load_ushort v{100+5*b+i}, v23, s[52:55], s10 offen offset:{b*1280+32*i}")
    a(f"v_mov_b32 v22, {LDS_EP}")
    a("ds_read_b32 v23, v22")
    a("s_waitcnt lgkmcnt(0)")
    a("v_readfirstlane_b32 s101, v23")
    EXTRA = 19
    a("v_max3_f32 v28, v32, v33, v34")
    for t in range(35, 63, 2): a(f"v_max3_f32 v28, v28, v{t}, v{t+1}")
    a("v_max_f32 v28, v28, v63")
    xreduce(a, [28], [20], op="v_max_f32")
    a("v_mul_f32 v29, s13, v28")
    for t in range(32): a(f"v_fma_f32 v{32+t}, v{32+t}, s13, -v29")
    for t in range(32): a(f"v_exp_f32 v{32+t}, v{32+t}")
    a("s_nop 0")
    a("v_add_f32 v30, v32, v33")
    for t in range(34, 64): a(f"v_add_f32 v30, v30, v{t}")
    xreduce(a, [30], [20])
    for i in range(8, 16): a(f"v_mov_b32 v{i}, 0")
    for t in range(32):
        a(f"s_waitcnt vmcnt({31-t+EXTRA})")
        for d in range(4):
            r = KV + 4*t + d
            a(f"v_lshlrev_b32 v22, 16, v{r}")
            a(f"v_and_b32 v23, 0xffff0000, v{r}")
            a(f"v_fmac_f32 v{8+2*d}, v{32+t}, v22")
            a(f"v_fmac_f32 v{9+2*d}, v{32+t}, v23")
    stamp(a, 3)
    xreduce(a, list(range(8, 16)), list(range(20, 28)))
    a("v_lshlrev_b32 v20, 1, v2")
    a("s_lshl_b32 s10, s8, 9")
    a("v_add_u32 v21, s10, v20")
    a("ds_write_b128 v21, v[8:11] offset:4096")
    a("ds_write_b128 v21, v[12:15] offset:4112")
    a("s_lshl_b32 s10, s8, 3")
    a("v_mov_b32 v22, s10")
    a("v_mov_b32 v29, v30")
    a("ds_write_b64 v22, v[28:29] offset:8192")
    a("s_waitcnt lgkmcnt(0)")
    a("s_barrier")
    a("s_cmp_eq_u32 s8, 0")
    a("s_cbranch_scc1 L_gate")
    a("s_cmp_lg_u32 s8, 1")
    a("s_cbranch_scc1 L_mlp")
    a("v_mov_b32 v22, 0")
    for w in range(4): a(f"ds_read_b128 v[{112+4*w}:{115+4*w}], v22 offset:{8192+16*w}")
    for w in range(8):
        a(f"ds_read_b128 v[{128+8*w}:{131+8*w}], v20 offset:{4096+w*512}")
        a(f"ds_read_b128 v[{132+8*w}:{135+8*w}], v20 offset:{4096+w*512+16}")
    a("s_waitcnt lgkmcnt(0)")
    a("v_max3_f32 v28, v112, v114, v116")
    a("v_max3_f32 v28, v28, v118, v120")
    a("v_max3_f32 v28, v28, v122, v124")
    a("v_max_f32 v28, v28, v126")
    a("v_mul_f32 v29, s13, v28")
    for w in range(8): a(f"v_fma_f32 v{112+2*w}, v{112+2*w}, s13, -v29")
    for w in range(8): a(f"v_exp_f32 v{112+2*w}, v{112+2*w}")
    a("s_nop 0")
    a("v_mul_f32 v29, v112, v113")
    for w in range(1, 8): a(f"v_fmac_f32 v29, v{112+2*w}, v{113+2*w}")
    for e in range(8): a(f"v_mul_f32 v{8+e}, v112, v{128+e}")
    for w in range(1, 8):
        for e in range(8): a(f"v_fmac_f32 v{8+e}, v{112+2*w}, v{128+8*w+e}")
    a("s_lshl_b32 s10, s6, 5")
    a("s_add_u32 s10, s10, s3")
    a("s_lshl_b32 s10, s10, 2")
    a("s_add_u32 s10, s10, s7")
    a("s_lshl_b32 s11, s10, 11")
    a(f"s_add_u32 s11, s11, {OP2}")
    for e in range(8):
        a(f"v_mov_b32 v{200+2*e}, v{8+e}")
        a(f"v_mov_b32 v{201+2*e}, s101")
    a("v_mov_b32 v216, v28")
    a("v_mov_b32 v217, s101")
    a("v_mov_b32 v218, v29")
    a("v_mov_b32 v219, s101")
    a("v_lshlrev_b32 v21, 2, v2")
    a("v_mov_b32 v22, 0")
    a("v_cmp_gt_u32 vcc, 16, v1")
    a("s_and_saveexec_b64 s[14:15], vcc")
    for k in range(4):
        a(f"buffer_store_dwordx4 v[{200+4*k}:{203+4*k}], v21, s[56:59], s11 offen offset:{16*k} sc1")
    a("s_mov_b64 exec, 1")
    a("buffer_store_dwordx4 v[216:219], v22, s[56:59], s11 offen offset:1024 sc1")
    a("s_mov_b64 exec, s[14:15]")
    stamp(a, 4)
    a("s_branch L_mlp")
    a.lab("L_gate")
    a("v_lshlrev_b32 v9, 2, v1")
    for k in range(5):
        a(f"buffer_load_dword v{200+k}, v9, s[52:55], 0 offen offset:{256*k}")
        a(f"buffer_load_dword v{205+k}, v9, s[52:55], 0 offen offset:{1280+256*k}")
        a(f"buffer_load_dword v{210+k}, v9, s[72:75], 0 offen offset:{256*k}")
    a("s_waitcnt vmcnt(0)")
    a("v_mov_b32 v216, 0")
    a("v_mov_b32 v217, 0")
    for k in range(5):
        for half in range(2):
            if half == 0:
                a(f"v_lshlrev_b32 v218, 16, v{210+k}")
                a(f"v_lshlrev_b32 v219, 16, v{200+k}")
                a(f"v_lshlrev_b32 v220, 16, v{205+k}")
            else:
                a(f"v_and_b32 v218, 0xffff0000, v{210+k}")
                a(f"v_and_b32 v219, 0xffff0000, v{200+k}")
                a(f"v_and_b32 v220, 0xffff0000, v{205+k}")
            a("v_mul_f32 v219, v219, v218")
            a("v_mul_f32 v220, v220, v218")
            rnd_bf16(a, 219, 221)
            rnd_bf16(a, 220, 221)
            a("v_add_f32 v216, v216, v219")
            a("v_add_f32 v217, v217, v220")
    dpp_reduce(a, [216, 217], (8, 4, 2, 1))
    xreduce(a, [216, 217], [218, 219])
    rnd_bf16(a, 216, 218)
    rnd_bf16(a, 217, 218)
    for r in (216, 217):
        a(f"v_mul_f32 v218, s13, v{r}")
        a("v_exp_f32 v218, -v218")
        a("s_nop 0")
        a("v_add_f32 v218, 1.0, v218")
        a(f"v_rcp_f32 v{r}, v218")
        a("s_nop 0")
        rnd_bf16(a, r, 218)
    a("v_mov_b32 v110, v216")
    a("v_mov_b32 v111, v217")
    a.lab("L_mlp")
    a("s_waitcnt vmcnt(0)")
    a(f"s_cmp_lt_u32 s2, {MLP0}")
    a("s_cbranch_scc1 L_b1")
    for i in range(112, 128): a(f"v_mov_b32 v{i}, 0")
    for i in range(100, 110): a(f"v_lshlrev_b32 v{i}, 16, v{i}")
    for i in range(5):
        for d in range(4):
            r = 80 + 4*i + d
            a(f"v_lshlrev_b32 v24, 16, v{r}")
            a(f"v_and_b32 v25, 0xffff0000, v{r}")
            for b in range(2):
                a(f"v_fmac_f32 v{112+8*b+2*d}, v{100+5*b+i}, v24")
                a(f"v_fmac_f32 v{113+8*b+2*d}, v{100+5*b+i}, v25")
    regs = list(range(112, 128))
    dpp_reduce(a, regs, (4, 8))
    xreduce(a, regs, list(range(128, 144)))
    a("v_and_b32 v21, 3, v1")
    a("s_lshl_b32 s10, s8, 8")
    a("v_lshlrev_b32 v24, 6, v21")
    a("v_add_u32 v24, s10, v24")
    for k in range(4): a(f"ds_write_b128 v24, v[{112+4*k}:{115+4*k}] offset:{12288+16*k}")
    a("s_waitcnt lgkmcnt(0)")
    a("s_barrier")
    a("s_cmp_lg_u32 s8, 2")
    a("s_cbranch_scc1 L_b1")
    a("v_lshrrev_b32 v20, 5, v1")
    a("v_and_b32 v21, 31, v1")
    a("v_lshrrev_b32 v22, 3, v21")
    a("v_lshlrev_b32 v22, 6, v22")
    a("v_lshl_add_u32 v22, v20, 5, v22")
    a("v_and_b32 v23, 7, v21")
    a("v_lshl_add_u32 v22, v23, 2, v22")
    for w in range(8): a(f"ds_read_b32 v{112+w}, v22 offset:{12288+256*w}")
    a("s_waitcnt lgkmcnt(0)")
    for w in range(1, 8): a(f"v_add_f32 v112, v112, v{112+w}")
    rnd_bf16(a, 112, 113)
    a("v_mul_f32 v113, s13, v112")
    a("v_exp_f32 v113, -v113")
    a("s_nop 0")
    a("v_add_f32 v113, 1.0, v113")
    a("v_rcp_f32 v113, v113")
    a("s_nop 0")
    a("v_mul_f32 v112, v112, v113")
    rnd_bf16(a, 112, 113)
    a("s_movk_i32 s10, 1728*8")
    a("v_mul_lo_u32 v22, v20, s10")
    a("v_lshl_add_u32 v22, v21, 3, v22")
    a(f"s_sub_u32 s11, s2, {MLP0}")
    a("s_lshl_b32 s11, s11, 8")
    a(f"s_add_u32 s11, s11, {H2}")
    a("v_mov_b32 v113, s101")
    a("buffer_store_dwordx2 v[112:113], v22, s[56:59], s11 offen sc1")
    a.lab("L_b1")
    a("s_cmp_ge_u32 s2, 250")
    a("s_cbranch_scc1 L_end")
    stamp(a, 5)
    a("v_lshlrev_b32 v5, 2, v0")
    a("s_cmp_ge_u32 s8, 4")
    a("s_cbranch_scc1 L_s2")
    a("s_cmp_ge_u32 s2, 160")
    a("s_cbranch_scc1 L_s1h")
    a("v_lshrrev_b32 v6, 7, v0")
    a("v_and_b32 v7, 127, v0")
    a("v_lshlrev_b32 v7, 3, v7")
    a("v_lshl_add_u32 v7, v6, 13, v7")
    a("v_lshlrev_b32 v6, 13, v6")
    a("s_mov_b32 s15, 0")
    a.lab("L_p1")
    a("s_lshl_b32 s10, s80, 14")
    a(f"s_add_u32 s10, s10, {OP2}")
    for b in range(2):
        for s in range(4):
            a(f"buffer_load_dwordx2 v[{112+8*b+2*s}:{113+8*b+2*s}], v7, s[56:59], s10 offen offset:{0} sc1")
            a(f"buffer_load_dwordx4 v[{128+16*b+4*s}:{131+16*b+4*s}], v6, s[56:59], s10 offen offset:1024 sc1")
            a("s_add_u32 s10, s10, 2048")
        if b == 0: a(f"s_add_u32 s10, s10, {32*4*2048 - 4*2048}")
    a("s_waitcnt vmcnt(0)")
    a("v_xor_b32 v20, s101, v113")
    for r in [115,117,119,121,123,125,127] + [129+2*i for i in range(16)]:
        a(f"v_xor_b32 v21, s101, v{r}")
        a("v_or_b32 v20, v20, v21")
    a("v_cmp_ne_u32 vcc, 0, v20")
    a("s_nop 4")
    a("s_cbranch_vccz L_p1d")
    a(f"s_sleep {SLEEP}")
    a("s_add_u32 s15, s15, 1")
    a("s_cmp_lt_u32 s15, 100000")
    a("s_cbranch_scc1 L_p1")
    a.lab("L_p1d")
    for b in range(2):
        for s in range(4):
            a(f"v_mov_b32 v{32+4*b+s}, v{112+8*b+2*s}")
            a(f"v_mov_b32 v{40+8*b+2*s}, v{128+16*b+4*s}")
            a(f"v_mov_b32 v{41+8*b+2*s}, v{130+16*b+4*s}")
    for b in range(2):
        ml = 40 + 8*b; P = 32 + 4*b
        a(f"v_max3_f32 v20, v{ml}, v{ml+2}, v{ml+4}")
        a(f"v_max_f32 v20, v20, v{ml+6}")
        a("v_mul_f32 v20, s13, v20")
        for s in range(4): a(f"v_fma_f32 v{ml+2*s}, v{ml+2*s}, s13, -v20")
        for s in range(4): a(f"v_exp_f32 v{ml+2*s}, v{ml+2*s}")
        a("s_nop 0")
        a(f"v_mul_f32 v21, v{ml}, v{ml+1}")
        for s in range(1, 4): a(f"v_fmac_f32 v21, v{ml+2*s}, v{ml+2*s+1}")
        a("v_rcp_f32 v21, v21")
        a(f"v_mul_f32 v{P}, v{ml}, v{P}")
        for s in range(1, 4): a(f"v_fmac_f32 v{P}, v{ml+2*s}, v{P+s}")
        a(f"v_mul_f32 v{P}, v{P}, v21")
        rnd_bf16(a, P, 22)
    a("ds_write_b32 v5, v32 offset:16384")
    a("ds_write_b32 v5, v36 offset:17408")
    a("s_branch L_s2")
    a.lab("L_s1h")
    a("v_min_u32 v6, 191, v0")
    a("v_lshlrev_b32 v6, 3, v6")
    a("s_mov_b32 s15, 0")
    a.lab("L_p2")
    a("s_lshl_b32 s10, s82, 3")
    a(f"s_add_u32 s10, s10, {H2}")
    a("buffer_load_dwordx2 v[112:113], v6, s[56:59], s10 offen sc1")
    a(f"s_add_u32 s10, s10, {1728*8}")
    a("buffer_load_dwordx2 v[114:115], v6, s[56:59], s10 offen sc1")
    a("s_waitcnt vmcnt(0)")
    a("v_xor_b32 v20, s101, v113")
    a("v_xor_b32 v21, s101, v115")
    a("v_or_b32 v20, v20, v21")
    a("v_cmp_ne_u32 vcc, 0, v20")
    a("s_nop 4")
    a("s_cbranch_vccz L_p2d")
    a(f"s_sleep {SLEEP}")
    a("s_add_u32 s15, s15, 1")
    a("s_cmp_lt_u32 s15, 100000")
    a("s_cbranch_scc1 L_p2")
    a.lab("L_p2d")
    a("v_mov_b32 v32, v112")
    a("v_mov_b32 v36, v114")
    a("v_cmp_gt_u32 vcc, 192, v0")
    a("s_nop 1")
    a("v_cndmask_b32 v32, 0, v32, vcc")
    a("v_cndmask_b32 v36, 0, v36, vcc")
    a("ds_write_b32 v5, v32 offset:16384")
    a("ds_write_b32 v5, v36 offset:17408")
    a.lab("L_s2")
    a("s_waitcnt lgkmcnt(0)")
    a("s_barrier")
    a("v_lshrrev_b32 v2, 3, v1")
    a("v_and_b32 v3, 7, v1")
    a("s_lshl_b32 s10, s8, 7")
    a("v_lshlrev_b32 v6, 2, v2")
    a("v_add_u32 v6, s10, v6")
    for i in range(4):
        a(f"ds_read_b32 v{32+2*i}, v6 offset:{16384+32*i}")
        a(f"ds_read_b32 v{33+2*i}, v6 offset:{17408+32*i}")
    for r in range(112, 128): a(f"v_mov_b32 v{r}, 0")
    a("s_waitcnt lgkmcnt(0)")
    for i in range(4):
        for d in range(4):
            r = 64 + 4*i + d
            a(f"v_lshlrev_b32 v20, 16, v{r}")
            a(f"v_and_b32 v21, 0xffff0000, v{r}")
            for b in range(2):
                a(f"v_fmac_f32 v{112+8*b+2*d}, v{32+2*i+b}, v20")
                a(f"v_fmac_f32 v{113+8*b+2*d}, v{32+2*i+b}, v21")
    regs = list(range(112, 128))
    dpp_reduce(a, regs, (8,))
    xreduce(a, regs, list(range(128, 144)))
    a("s_lshl_b32 s10, s8, 9")
    a("v_lshlrev_b32 v6, 6, v3")
    a("v_add_u32 v6, s10, v6")
    for k in range(4): a(f"ds_write_b128 v6, v[{112+4*k}:{115+4*k}] offset:{18432+16*k}")
    a("s_waitcnt lgkmcnt(0)")
    a("s_barrier")
    a("s_cmp_lg_u32 s8, 0")
    a("s_cbranch_scc1 L_end")
    a("v_lshlrev_b32 v6, 6, v2")
    a("v_lshl_add_u32 v6, v3, 2, v6")
    for w in range(8):
        a(f"ds_read_b32 v{32+w}, v6 offset:{18432+512*w}")
        a(f"ds_read_b32 v{40+w}, v6 offset:{18432+512*w+32}")
    a("s_waitcnt lgkmcnt(0)")
    for w in range(1, 8):
        a(f"v_add_f32 v32, v32, v{32+w}")
        a(f"v_add_f32 v40, v40, v{40+w}")
    a("s_mul_i32 s10, s80, 10240")
    a("s_lshl_b32 s11, s81, 9")
    a("s_add_u32 s10, s10, s11")
    a(f"s_add_u32 s10, s10, {PART2}")
    a("v_lshlrev_b32 v6, 3, v1")
    a("v_mov_b32 v33, s101")
    a("v_mov_b32 v41, s101")
    a("buffer_store_dwordx2 v[32:33], v6, s[56:59], s10 offen sc1")
    a("s_add_u32 s10, s10, 5120")
    a("buffer_store_dwordx2 v[40:41], v6, s[56:59], s10 offen sc1")
    stamp(a, 6)
    a("s_cmp_lg_u32 s80, 24")
    a("s_cbranch_scc1 L_end")
    a("s_mov_b32 s15, 0")
    a.lab("L_p3")
    a("s_lshl_b32 s10, s81, 9")
    a(f"s_add_u32 s10, s10, {PART2}")
    for kb in range(25):
        a(f"buffer_load_dwordx2 v[{148+4*kb}:{149+4*kb}], v6, s[56:59], s10 offen sc1")
        a("s_add_u32 s10, s10, 5120")
        a(f"buffer_load_dwordx2 v[{150+4*kb}:{151+4*kb}], v6, s[56:59], s10 offen sc1")
        a("s_add_u32 s10, s10, 5120")
    a("s_waitcnt vmcnt(0)")
    a("v_mov_b32 v20, 0")
    for kb in range(25):
        for o in (149, 151):
            a(f"v_xor_b32 v21, s101, v{o+4*kb}")
            a("v_or_b32 v20, v20, v21")
    a("v_cmp_ne_u32 vcc, 0, v20")
    a("s_nop 4")
    a("s_cbranch_vccz L_p3d")
    a(f"s_sleep {SLEEP}")
    a("s_add_u32 s15, s15, 1")
    a("s_cmp_lt_u32 s15, 100000")
    a("s_cbranch_scc1 L_p3")
    a.lab("L_p3d")
    for kb in range(25):
        a(f"v_mov_b32 v{40+kb}, v{148+4*kb}")
        a(f"v_mov_b32 v{72+kb}, v{150+4*kb}")
    for base, g in ((40, 110), (72, 111)):
        for kb in range(1, 16): a(f"v_add_f32 v{base}, v{base}, v{base+kb}")
        for kb in range(17, 25): a(f"v_add_f32 v{base+16}, v{base+16}, v{base+kb}")
        rnd_bf16(a, base, 22)
        rnd_bf16(a, base+16, 22)
        a(f"v_mul_f32 v24, v{g}, v{base}")
        rnd_bf16(a, 24, 22)
        a(f"v_sub_f32 v25, 1.0, v{g}")
        rnd_bf16(a, 25, 22)
        a(f"v_mul_f32 v25, v25, v{base+16}")
        rnd_bf16(a, 25, 22)
        a("v_add_f32 v24, v24, v25")
        a(f"v_cvt_pk_bf16_f32 v{base}, v24, v24")
    a("v_lshlrev_b32 v25, 1, v1")
    a("s_lshl_b32 s10, s81, 7")
    a("buffer_store_short v40, v25, s[76:79], s10 offen")
    a("buffer_store_short v72, v25, s[76:79], s10 offen offset:1280")
    stamp(a, 7)
    a.lab("L_end")
    a("s_endpgm")

def main():
    a = A()
    hdr = open(f"cdna_kernels/{NAME}.s.ref").read().split("; Override launch")[0]
    a.raw(hdr.rstrip())
    a.raw("; @launch grid=(256,1,1) block=(512,1,1) lds=24576")
    a.raw('.amdgcn_target "amdgcn-amd-amdhsa--gfx950"')
    a.raw(".text")
    kernel(a)
    a.raw('.section .rodata,"a"')
    a.raw(f""".p2align 6
.amdhsa_kernel {NAME}_kernel
  .amdhsa_next_free_vgpr 256
  .amdhsa_next_free_sgpr 102
  .amdhsa_accum_offset 256
  .amdhsa_group_segment_fixed_size 0
  .amdhsa_kernarg_size 96
  .amdhsa_user_sgpr_count 2
  .amdhsa_user_sgpr_kernarg_segment_ptr 1
  .amdhsa_system_sgpr_workgroup_id_x 1
.end_amdhsa_kernel
""")
    out = sys.argv[1] if len(sys.argv) > 1 else f"cdna_kernels/{NAME}.s"
    open(out, "w").write(a.text())
main()
```

```python
import sys, os
NAME = "gated_mix__mha_block_cached__dense_activation_silu__decode"
NT = " nt"
DIAG = os.environ.get("DIAG", "0") == "1"
MLP0 = 202
SPOLL = os.environ.get("SPOLL","0")=="1"
SLEEP = os.environ.get("SLEEP","2")
MAP = os.environ.get("MAP","0")
TST = os.environ.get("TST","")
K1 = int(os.environ.get("K1","8"))
WQF = os.environ.get("WQF"," nt")

class A:
    def __init__(s): s.l = []
    def __call__(s, x): s.l.append("    " + x)
    def lab(s, x): s.l.append(x + ":")
    def raw(s, x): s.l.append(x)
    def text(s): return "\n".join(s.l) + "\n"

LOG2E = 0x3fb8aa3b
SCALE = 0x3db504f3
WS_OPART = 0
WS_ML    = 0x20000
WS_H     = 0x40000
WS_PART  = 0x90000
WS_DIAG  = 0xC0000
WS_FLAG  = 0xB0000
WS_Q = 0x50000
QP = 12288
OP2 = 0x100000
H2 = 0x180000
PART2 = 0x190000
LDS_EP = 20480
KV = 112
CT_HEAD = 0
CT_MLP = 128
CT_NB = 160

def stamp(a, idx):
    if not DIAG: return
    a("s_memrealtime s[90:91]")
    a("s_waitcnt lgkmcnt(0)")
    a("s_lshl_b32 s92, s2, 8")
    a("s_lshl_b32 s93, s8, 5")
    a("s_add_u32 s92, s92, s93")
    a(f"s_add_u32 s92, s92, {WS_DIAG + idx*4}")
    a("v_mov_b32 v26, s90")
    a("v_mov_b32 v27, 0")
    a("s_mov_b64 s[94:95], exec")
    a("s_mov_b64 exec, 1")
    a("buffer_store_dword v26, v27, s[56:59], s92 offen")
    a("s_mov_b64 exec, s[94:95]")

RW = int(os.environ.get("RW","5")); RG = int(os.environ.get("RG","3"))
IPF = os.environ.get("IPF","0")=="1"
def kvaddr(a, t):
    a(f"s_add_u32 s10, s83, {t*1024}")
    a("s_and_b32 s10, s10, 0x7fff")
    a("s_add_u32 s10, s10, s9")

def srd(a, d, lo, hi, nbytes):
    a(f"s_mov_b32 s{d}, s{lo}")
    a(f"s_and_b32 s{d+1}, s{hi}, 0xffff")
    a(f"s_mov_b32 s{d+2}, {nbytes}")
    a(f"s_mov_b32 s{d+3}, 0x00020000")

def rnd_bf16(a, v, tmp):
    a(f"v_cvt_pk_bf16_f32 v{tmp}, v{v}, v{v}")
    a(f"v_lshlrev_b32 v{v}, 16, v{tmp}")

def xreduce(a, regs, tmp, op="v_add_f32"):
    for sw in ("v_permlane16_swap_b32", "v_permlane32_swap_b32"):
        for r, t in zip(regs, tmp): a(f"v_mov_b32 v{t}, v{r}")
        a("s_nop 1")
        for r, t in zip(regs, tmp): a(f"{sw} v{r}, v{t}")
        a("s_nop 1")
        for r, t in zip(regs, tmp): a(f"{op} v{r}, v{r}, v{t}")

def dpp_reduce(a, regs, rors):
    a("s_nop 1")
    for ro in rors:
        for r in regs:
            a(f"v_add_f32_dpp v{r}, v{r}, v{r} row_ror:{ro} row_mask:0xf bank_mask:0xf")
        if len(regs) < 3: a("s_nop 1")

_lab = [0]
def poll(a, off_sreg, target):
    _lab[0] += 1
    L = f"Lpoll{_lab[0]}"
    a("v_mov_b32 v30, 0")
    a("s_mov_b32 s15, 0")
    a.lab(L)
    if SPOLL:
        a(f"s_load_dword s14, s[36:37], {off_sreg} glc")
        a("s_waitcnt lgkmcnt(0)")
    else:
        a(f"buffer_load_dword v29, v30, s[64:67], {off_sreg} offen sc1")
        a("s_waitcnt vmcnt(0)")
        a("v_readfirstlane_b32 s14, v29")
    a(f"s_cmp_ge_u32 s14, {target}")
    a(f"s_cbranch_scc1 {L}d")
    a(f"s_sleep {SLEEP}")
    a("s_add_u32 s15, s15, 1")
    a("s_cmp_lt_u32 s15, 200000")
    a(f"s_cbranch_scc1 {L}")
    a.lab(L + "d")

def pollf(a, vaddr, vep):
    _lab[0] += 1
    L = f"Lpf{_lab[0]}"
    a("s_mov_b32 s15, 0")
    a(f"s_mov_b32 s14, {WS_FLAG}")
    a.lab(L)
    a(f"buffer_load_dword v29, v{vaddr}, s[56:59], s14 offen sc1")
    a("s_waitcnt vmcnt(0)")
    a(f"v_cmp_ne_u32 vcc, v29, v{vep}")
    a("s_nop 4")
    a(f"s_cbranch_vccz {L}d")
    a(f"s_sleep {SLEEP}")
    a("s_add_u32 s15, s15, 1")
    a("s_cmp_lt_u32 s15, 200000")
    a(f"s_cbranch_scc1 {L}")
    a.lab(L + "d")

def setflag(a, off_sreg, vep):
    a("s_mov_b64 s[14:15], exec")
    a("s_mov_b64 exec, 1")
    a("v_mov_b32 v30, 0")
    a(f"buffer_store_dword v{vep}, v30, s[56:59], {off_sreg} offen sc1")
    a("s_mov_b64 exec, s[14:15]")

def signal(a, off_sreg, ret=False):
    a("s_mov_b64 s[14:15], exec")
    a("s_mov_b64 exec, 1")
    a("v_mov_b32 v29, 1")
    a("v_mov_b32 v30, 0")
    a(f"buffer_atomic_add v29, v30, s[64:67], {off_sreg} offen{' sc0' if ret else ''} sc1")
    a("s_mov_b64 exec, s[14:15]")

def kernel(a):
    K = NAME + "_kernel"
    a.raw(f".globl {K}\n.p2align 8\n.type {K},@function")
    a.lab(K)
    a("s_cmp_ge_u32 s2, 256")
    a("s_cbranch_scc1 L_end")
    a("s_load_dwordx16 s[16:31], s[0:1], 0")
    a("s_load_dwordx8 s[32:39], s[0:1], 64")
    a("s_and_b32 s3, s2, 7")
    a("s_lshl_b32 s3, s3, 2")
    a("s_lshr_b32 s4, s2, 3")
    a("s_and_b32 s4, s4, 3")
    a("s_add_u32 s3, s3, s4")
    a("s_lshr_b32 s5, s2, 5")
    if MAP == "1":
        a("s_lshr_b32 s3, s2, 3")
        a("s_and_b32 s5, s2, 7")
    a("s_lshr_b32 s6, s5, 2")
    a("s_and_b32 s7, s5, 3")
    a("v_lshrrev_b32 v20, 6, v0")
    a("v_and_b32 v1, 63, v0")
    a("v_readfirstlane_b32 s8, v20")
    a("v_and_b32 v2, 15, v1")
    a("v_lshlrev_b32 v2, 4, v2")
    a("v_lshrrev_b32 v3, 4, v1")
    a("v_lshlrev_b32 v4, 4, v1")
    a("v_lshl_add_u32 v5, v3, 13, v2")
    a("v_and_b32 v20, 15, v1")
    a("v_lshl_add_u32 v20, v20, 2, v3")
    a("v_lshlrev_b32 v20, 1, v20")
    a(f"s_mov_b32 s12, {SCALE}")
    a(f"s_mov_b32 s13, {LOG2E}")
    a("s_waitcnt lgkmcnt(0)")
    srd(a, 40, 18, 19, 0x4000000)
    srd(a, 44, 20, 21, 0x4000000)
    srd(a, 48, 22, 23, 640*8192)
    srd(a, 52, 16, 17, 2560)
    srd(a, 56, 38, 39, 0x200000)
    srd(a, 60, 28, 29, 640*3456)
    srd(a, 64, 36, 37, 256)
    srd(a, 72, 32, 33, 1280)
    srd(a, 76, 34, 35, 2560)
    stamp(a, 0)
    a("s_lshl_b32 s9, s6, 5")
    a("s_add_u32 s9, s9, s3")
    a("s_lshl_b32 s9, s9, 20")
    a("s_lshl_b32 s10, s7, 18")
    a("s_add_u32 s9, s9, s10")
    a("s_lshl_b32 s10, s8, 15")
    a("s_add_u32 s9, s9, s10")
    a("v_lshrrev_b32 v20, 1, v1")
    a("v_and_b32 v21, 1, v1")
    a("s_cmp_lg_u32 s8, 7")
    a("s_cbranch_scc1 L_qld")
    if IPF:
        a("s_getpc_b64 s[84:85]")
        a.lab("L_pc")
        a("s_mov_b32 s86, 0")
        a.lab("L_ipf")
        for i in range(4):
            a(f"s_load_dword s{88+i}, s[84:85], s86")
            a("s_add_u32 s86, s86, 128")
        a("s_cmp_lt_u32 s86, L_end - L_pc - 512")
        a("s_cbranch_scc1 L_ipf")
    a("s_memrealtime s[100:101]")
    a("s_waitcnt lgkmcnt(0)")
    a("s_or_b32 s100, s100, 1")
    a("v_mov_b32 v6, s100")
    a("v_mov_b32 v7, 0")
    a("v_mov_b32 v22, 0")
    a("s_movk_i32 s11, 240")
    a("s_mov_b64 exec, 1")
    a("buffer_atomic_cmpswap v[6:7], v22, s[64:67], s11 offen sc0 sc1")
    a("s_mov_b64 exec, -1")
    a("s_waitcnt vmcnt(0)")
    a("v_readfirstlane_b32 s101, v6")
    a("s_cmp_eq_u32 s101, 0")
    a("s_cselect_b32 s101, s100, s101")
    a("v_mov_b32 v6, s101")
    a(f"v_mov_b32 v22, {LDS_EP}")
    a("ds_write_b32 v22, v6")
    for r in list(range(56, 62)) + list(range(64, 76)): a(f"v_mov_b32 v{r}, 0")
    a("s_branch L_kld")
    a.lab("L_qld")
    a("v_lshlrev_b32 v22, 13, v20")
    a("v_lshl_add_u32 v22, v21, 4, v22")
    if "nowq" in TST: a("v_lshlrev_b32 v22, 4, v21")
    a("v_lshlrev_b32 v23, 1, v20")
    a("s_lshl_b32 s10, s8, 6")
    for k in range(3):
        for b in range(2):
            a(f"buffer_load_ushort v{56+2*k+b}, v23, s[52:55], s10 offen offset:{b*1280 + 448*k}")
    a("s_lshl_b32 s10, s8, 18")
    a("s_lshl_b32 s11, s3, 8")
    a("s_add_u32 s10, s10, s11")
    a("s_lshl_b32 s11, s5, 5")
    a("s_add_u32 s10, s10, s11")
    a(f"buffer_load_dwordx4 v[64:67], v22, s[48:51], s10 offen{WQF}")
    a(f"s_add_u32 s10, s10, {7*32*8192}")
    a(f"buffer_load_dwordx4 v[68:71], v22, s[48:51], s10 offen{WQF}")
    a(f"s_add_u32 s10, s10, {7*32*8192}")
    a(f"buffer_load_dwordx4 v[72:75], v22, s[48:51], s10 offen{WQF}")
    a.lab("L_kld")
    a(f"s_mul_i32 s83, s8, {RW}")
    a(f"s_mul_i32 s10, s2, {RG}")
    a("s_add_u32 s83, s83, s10")
    a("s_lshl_b32 s83, s83, 10")
    for t in range(K1):
        kvaddr(a, t)
        a(f"buffer_load_dwordx4 v[{KV+4*t}:{KV+3+4*t}], v4, s[40:43], s10 offen{NT}")
    a("s_cmp_ge_u32 s2, 160")
    a("s_cbranch_scc1 L_rw2")
    srd(a, 68, 24, 25, 4096*1280)
    a("s_mul_i32 s80, s2, 6554")
    a("s_lshr_b32 s80, s80, 16")
    a("s_mul_i32 s81, s80, 10")
    a("s_sub_u32 s81, s2, s81")
    a("s_lshl_b32 s82, s80, 8")
    a("s_branch L_rdone")
    a.lab("L_rw2")
    srd(a, 68, 30, 31, 1728*1280)
    a("s_sub_u32 s81, s2, 160")
    a("s_mul_i32 s80, s81, 6554")
    a("s_lshr_b32 s80, s80, 16")
    a("s_mul_i32 s82, s80, 10")
    a("s_sub_u32 s81, s81, s82")
    a("s_mul_i32 s82, s80, 192")
    a("s_add_u32 s80, s80, 16")
    a.lab("L_rdone")
    for i in range(32, 48): a(f"v_mov_b32 v{i}, 0")
    a(f"s_waitcnt vmcnt({K1})")
    for r in range(56, 62): a(f"v_lshlrev_b32 v{r}, 16, v{r}")
    for k in range(3):
        for d in range(4):
            r = 64 + 4*k + d
            a(f"v_lshlrev_b32 v22, 16, v{r}")
            a(f"v_and_b32 v23, 0xffff0000, v{r}")
            for b in range(2):
                a(f"v_fmac_f32 v{32+8*b+2*d}, v{56+2*k+b}, v22")
                a(f"v_fmac_f32 v{33+8*b+2*d}, v{56+2*k+b}, v23")
    regs = list(range(32, 48))
    dpp_reduce(a, regs, (2, 4, 8))
    xreduce(a, regs, list(range(76, 92)))
    a("v_lshlrev_b32 v22, 6, v21")
    a("s_lshl_b32 s10, s8, 7")
    a("v_add_u32 v22, s10, v22")
    for k in range(4): a(f"ds_write_b128 v22, v[{32+4*k}:{35+4*k}] offset:{QP+16*k}")
    a("s_waitcnt lgkmcnt(0)")
    a("s_barrier")
    a("s_cmp_lg_u32 s8, 0")
    a("s_cbranch_scc1 L_q1b")
    a(f"v_mov_b32 v22, {LDS_EP}")
    a("ds_read_b32 v23, v22")
    a("s_waitcnt lgkmcnt(0)")
    a("v_readfirstlane_b32 s101, v23")
    a("v_lshrrev_b32 v20, 4, v1")
    a("v_and_b32 v20, 1, v20")
    a("v_and_b32 v21, 15, v1")
    a("v_lshrrev_b32 v22, 3, v21")
    a("v_lshlrev_b32 v22, 6, v22")
    a("v_lshl_add_u32 v22, v20, 5, v22")
    a("v_and_b32 v23, 7, v21")
    a("v_lshl_add_u32 v22, v23, 2, v22")
    for w in range(8): a(f"ds_read_b32 v{32+w}, v22 offset:{QP+128*w}")
    a("s_waitcnt lgkmcnt(0)")
    for w in range(1, 8): a(f"v_add_f32 v32, v32, v{32+w}")
    a("s_nop 1")
    a("v_mov_b32_dpp v33, v32 quad_perm:[1,0,3,2] row_mask:0xf bank_mask:0xf")
    a("v_cvt_pk_bf16_f32 v34, v32, v33")
    a("v_mov_b32 v35, s101")
    a("v_lshlrev_b32 v22, 9, v20")
    a("v_lshrrev_b32 v23, 1, v21")
    a("v_lshl_add_u32 v22, v23, 3, v22")
    a("s_lshl_b32 s10, s3, 10")
    a("s_lshl_b32 s11, s5, 6")
    a("s_add_u32 s10, s10, s11")
    a(f"s_add_u32 s10, s10, {WS_Q}")
    a("s_mov_b32 exec_lo, 0x55555555")
    a("s_mov_b32 exec_hi, 0")
    a("buffer_store_dwordx2 v[34:35], v22, s[56:59], s10 offen sc1")
    a("s_mov_b64 exec, -1")
    a.lab("L_q1b")
    a("s_barrier")
    for t in range(K1, 32):
        kvaddr(a, t)
        a(f"buffer_load_dwordx4 v[{KV+4*t}:{KV+3+4*t}], v4, s[40:43], s10 offen{NT}")
    a("s_cmp_lg_u32 s8, 0")
    a("s_cbranch_scc1 L_qwait")
    a("s_lshl_b32 s10, s3, 1")
    a("s_add_u32 s10, s10, s6")
    a("s_lshl_b32 s10, s10, 9")
    a(f"s_add_u32 s10, s10, {WS_Q}")
    for ch in range(4):
        a("s_mov_b32 s15, 0")
        a.lab(f"L_qc{ch}")
        a("s_load_dwordx16 s[16:31], s[38:39], s10 glc")
        a("s_add_u32 s11, s10, 64")
        a("s_load_dwordx16 s[84:99], s[38:39], s11 glc")
        a("s_waitcnt lgkmcnt(0)")
        a("s_mov_b32 s14, 0")
        for i in range(8):
            a(f"s_xor_b32 s11, s{17+2*i}, s101")
            a("s_or_b32 s14, s14, s11")
            a(f"s_xor_b32 s11, s{85+2*i}, s101")
            a("s_or_b32 s14, s14, s11")
        a("s_cmp_eq_u32 s14, 0")
        a(f"s_cbranch_scc1 L_qd{ch}")
        a("s_sleep 32" if "slow" in TST else "s_sleep 1")
        a("s_add_u32 s15, s15, 1")
        a("s_cmp_lt_u32 s15, 200000")
        a(f"s_cbranch_scc1 L_qc{ch}")
        a.lab(f"L_qd{ch}")
        for cc in range(4):
            c = 4*ch + cc
            m = 0x00010001 << c
            a(f"s_mov_b32 exec_lo, {m}")
            a(f"s_mov_b32 exec_hi, {m}")
            for d in range(4):
                i = 4*cc + d
                sreg = (16 + 2*i) if i < 8 else (84 + 2*(i-8))
                a(f"v_mov_b32 v{16+d}, s{sreg}")
        a("s_mov_b64 exec, -1")
        a("s_add_u32 s10, s10, 128")
    a("ds_write_b128 v2, v[16:19]")
    a("s_waitcnt lgkmcnt(0)")
    a.lab("L_qwait")
    a("s_barrier")
    a("ds_read_b128 v[16:19], v2")
    a("s_waitcnt lgkmcnt(0)")
    stamp(a, 1)
    a("s_mov_b32 s10, s9")
    for g4 in range(8):
        a("s_waitcnt vmcnt(28)")
        ts = [4*g4 + i for i in range(4)]
        for d in range(4):
            for t in ts:
                c = "0" if d == 0 else f"v{32+t}"
                a(f"v_dot2_f32_bf16 v{32+t}, v{KV+4*t+d}, v{16+d}, {c}")
        for t in ts:
            kvaddr(a, t)
            a(f"buffer_load_dwordx4 v[{KV+4*t}:{KV+3+4*t}], v4, s[44:47], s10 offen{NT}")
        for ro in (8, 4, 2, 1):
            for t in ts:
                a(f"v_add_f32_dpp v{32+t}, v{32+t}, v{32+t} row_ror:{ro} row_mask:0xf bank_mask:0xf")
        for i, t in enumerate(ts): a(f"v_cvt_pk_bf16_f32 v{20+i}, v{32+t}, v{32+t}")
        for i, t in enumerate(ts): a(f"v_lshlrev_b32 v{32+t}, 16, v{20+i}")
        for t in ts: a(f"v_mul_f32 v{32+t}, s12, v{32+t}")
        for i, t in enumerate(ts): a(f"v_cvt_pk_bf16_f32 v{20+i}, v{32+t}, v{32+t}")
        for i, t in enumerate(ts): a(f"v_lshlrev_b32 v{32+t}, 16, v{20+i}")
    stamp(a, 2)
    a("v_lshrrev_b32 v20, 3, v1")
    a("v_and_b32 v21, 7, v1")
    a("s_movk_i32 s10, 1280")
    a("v_mul_lo_u32 v22, v20, s10")
    a("v_lshl_add_u32 v22, v21, 4, v22")
    a("s_lshl_b32 s10, s8, 5")
    a("s_add_u32 s10, s10, s82")
    a("s_mul_i32 s10, s10, 1280")
    a("s_lshl_b32 s11, s81, 7")
    a("s_add_u32 s10, s10, s11")
    a("s_cmp_ge_u32 s2, %d" % (0 if "nopre" in TST else 250))
    a("s_cselect_b32 s10, 0x7f000000, s10")
    for i in range(4):
        a(f"buffer_load_dwordx4 v[{64+4*i}:{67+4*i}], v22, s[68:71], s10 offen{NT}")
        a("s_add_u32 s10, s10, 10240")
    a("v_lshrrev_b32 v20, 2, v1")
    a("v_and_b32 v21, 3, v1")
    a("s_movk_i32 s10, 3456")
    a("v_mul_lo_u32 v22, v20, s10")
    a("v_lshl_add_u32 v22, v21, 4, v22")
    a("v_lshlrev_b32 v23, 1, v20")
    a("s_mul_i32 s10, s8, 80*3456")
    a(f"s_sub_u32 s11, s2, {MLP0}")
    a("s_lshl_b32 s11, s11, 6")
    a("s_add_u32 s10, s10, s11")
    a(f"s_cmp_lt_u32 s2, {256 if 'nopre' in TST else MLP0}")
    a("s_cselect_b32 s10, 0x7f000000, s10")
    for i in range(5):
        a(f"buffer_load_dwordx4 v[{80+4*i}:{83+4*i}], v22, s[60:63], s10 offen{NT}")
        a(f"s_add_u32 s10, s10, {16*3456}")
    a("s_mul_i32 s10, s8, 160")
    for b in range(2):
        for i in range(5):
            a(f"buffer_load_ushort v{100+5*b+i}, v23, s[52:55], s10 offen offset:{b*1280+32*i}")
    a(f"v_mov_b32 v22, {LDS_EP}")
    a("ds_read_b32 v23, v22")
    a("s_waitcnt lgkmcnt(0)")
    a("v_readfirstlane_b32 s101, v23")
    EXTRA = 19
    a("v_max3_f32 v28, v32, v33, v34")
    for t in range(35, 63, 2): a(f"v_max3_f32 v28, v28, v{t}, v{t+1}")
    a("v_max_f32 v28, v28, v63")
    xreduce(a, [28], [20], op="v_max_f32")
    a("v_mul_f32 v29, s13, v28")
    for t in range(32): a(f"v_fma_f32 v{32+t}, v{32+t}, s13, -v29")
    for t in range(32): a(f"v_exp_f32 v{32+t}, v{32+t}")
    a("s_nop 0")
    a("v_add_f32 v30, v32, v33")
    for t in range(34, 64): a(f"v_add_f32 v30, v30, v{t}")
    xreduce(a, [30], [20])
    for i in range(8, 16): a(f"v_mov_b32 v{i}, 0")
    for t in range(32):
        a(f"s_waitcnt vmcnt({31-t+EXTRA})")
        for d in range(4):
            r = KV + 4*t + d
            a(f"v_lshlrev_b32 v22, 16, v{r}")
            a(f"v_and_b32 v23, 0xffff0000, v{r}")
            a(f"v_fmac_f32 v{8+2*d}, v{32+t}, v22")
            a(f"v_fmac_f32 v{9+2*d}, v{32+t}, v23")
    stamp(a, 3)
    xreduce(a, list(range(8, 16)), list(range(20, 28)))
    a("v_lshlrev_b32 v20, 1, v2")
    a("s_lshl_b32 s10, s8, 9")
    a("v_add_u32 v21, s10, v20")
    a("ds_write_b128 v21, v[8:11] offset:4096")
    a("ds_write_b128 v21, v[12:15] offset:4112")
    a("s_lshl_b32 s10, s8, 3")
    a("v_mov_b32 v22, s10")
    a("v_mov_b32 v29, v30")
    a("ds_write_b64 v22, v[28:29] offset:8192")
    a("s_waitcnt lgkmcnt(0)")
    a("s_barrier")
    a("s_cmp_eq_u32 s8, 0")
    a("s_cbranch_scc1 L_gate")
    a("s_cmp_lg_u32 s8, 1")
    a("s_cbranch_scc1 L_mlp")
    a("v_mov_b32 v22, 0")
    for w in range(4): a(f"ds_read_b128 v[{112+4*w}:{115+4*w}], v22 offset:{8192+16*w}")
    for w in range(8):
        a(f"ds_read_b128 v[{128+8*w}:{131+8*w}], v20 offset:{4096+w*512}")
        a(f"ds_read_b128 v[{132+8*w}:{135+8*w}], v20 offset:{4096+w*512+16}")
    a("s_waitcnt lgkmcnt(0)")
    a("v_max3_f32 v28, v112, v114, v116")
    a("v_max3_f32 v28, v28, v118, v120")
    a("v_max3_f32 v28, v28, v122, v124")
    a("v_max_f32 v28, v28, v126")
    a("v_mul_f32 v29, s13, v28")
    for w in range(8): a(f"v_fma_f32 v{112+2*w}, v{112+2*w}, s13, -v29")
    for w in range(8): a(f"v_exp_f32 v{112+2*w}, v{112+2*w}")
    a("s_nop 0")
    a("v_mul_f32 v29, v112, v113")
    for w in range(1, 8): a(f"v_fmac_f32 v29, v{112+2*w}, v{113+2*w}")
    for e in range(8): a(f"v_mul_f32 v{8+e}, v112, v{128+e}")
    for w in range(1, 8):
        for e in range(8): a(f"v_fmac_f32 v{8+e}, v{112+2*w}, v{128+8*w+e}")
    a("s_lshl_b32 s10, s6, 5")
    a("s_add_u32 s10, s10, s3")
    a("s_lshl_b32 s10, s10, 2")
    a("s_add_u32 s10, s10, s7")
    a("s_lshl_b32 s11, s10, 11")
    a(f"s_add_u32 s11, s11, {OP2}")
    for e in range(8):
        a(f"v_mov_b32 v{200+2*e}, v{8+e}")
        a(f"v_mov_b32 v{201+2*e}, s101")
    a("v_mov_b32 v216, v28")
    a("v_mov_b32 v217, s101")
    a("v_mov_b32 v218, v29")
    a("v_mov_b32 v219, s101")
    a("v_lshlrev_b32 v21, 2, v2")
    a("v_mov_b32 v22, 0")
    a("v_cmp_gt_u32 vcc, 16, v1")
    a("s_and_saveexec_b64 s[14:15], vcc")
    for k in range(4):
        a(f"buffer_store_dwordx4 v[{200+4*k}:{203+4*k}], v21, s[56:59], s11 offen offset:{16*k} sc1")
    a("s_mov_b64 exec, 1")
    a("buffer_store_dwordx4 v[216:219], v22, s[56:59], s11 offen offset:1024 sc1")
    a("s_mov_b64 exec, s[14:15]")
    stamp(a, 4)
    a("s_branch L_mlp")
    a.lab("L_gate")
    a("v_lshlrev_b32 v9, 2, v1")
    for k in range(5):
        a(f"buffer_load_dword v{200+k}, v9, s[52:55], 0 offen offset:{256*k}")
        a(f"buffer_load_dword v{205+k}, v9, s[52:55], 0 offen offset:{1280+256*k}")
        a(f"buffer_load_dword v{210+k}, v9, s[72:75], 0 offen offset:{256*k}")
    a("s_waitcnt vmcnt(0)")
    a("v_mov_b32 v216, 0")
    a("v_mov_b32 v217, 0")
    for k in range(5):
        for half in range(2):
            if half == 0:
                a(f"v_lshlrev_b32 v218, 16, v{210+k}")
                a(f"v_lshlrev_b32 v219, 16, v{200+k}")
                a(f"v_lshlrev_b32 v220, 16, v{205+k}")
            else:
                a(f"v_and_b32 v218, 0xffff0000, v{210+k}")
                a(f"v_and_b32 v219, 0xffff0000, v{200+k}")
                a(f"v_and_b32 v220, 0xffff0000, v{205+k}")
            a("v_mul_f32 v219, v219, v218")
            a("v_mul_f32 v220, v220, v218")
            rnd_bf16(a, 219, 221)
            rnd_bf16(a, 220, 221)
            a("v_add_f32 v216, v216, v219")
            a("v_add_f32 v217, v217, v220")
    dpp_reduce(a, [216, 217], (8, 4, 2, 1))
    xreduce(a, [216, 217], [218, 219])
    rnd_bf16(a, 216, 218)
    rnd_bf16(a, 217, 218)
    for r in (216, 217):
        a(f"v_mul_f32 v218, s13, v{r}")
        a("v_exp_f32 v218, -v218")
        a("s_nop 0")
        a("v_add_f32 v218, 1.0, v218")
        a(f"v_rcp_f32 v{r}, v218")
        a("s_nop 0")
        rnd_bf16(a, r, 218)
    a("v_mov_b32 v110, v216")
    a("v_mov_b32 v111, v217")
    a.lab("L_mlp")
    a("s_waitcnt vmcnt(0)")
    a(f"s_cmp_lt_u32 s2, {MLP0}")
    a("s_cbranch_scc1 L_b1")
    for i in range(112, 128): a(f"v_mov_b32 v{i}, 0")
    for i in range(100, 110): a(f"v_lshlrev_b32 v{i}, 16, v{i}")
    for i in range(5):
        for d in range(4):
            r = 80 + 4*i + d
            a(f"v_lshlrev_b32 v24, 16, v{r}")
            a(f"v_and_b32 v25, 0xffff0000, v{r}")
            for b in range(2):
                a(f"v_fmac_f32 v{112+8*b+2*d}, v{100+5*b+i}, v24")
                a(f"v_fmac_f32 v{113+8*b+2*d}, v{100+5*b+i}, v25")
    regs = list(range(112, 128))
    dpp_reduce(a, regs, (4, 8))
    xreduce(a, regs, list(range(128, 144)))
    a("v_and_b32 v21, 3, v1")
    a("s_lshl_b32 s10, s8, 8")
    a("v_lshlrev_b32 v24, 6, v21")
    a("v_add_u32 v24, s10, v24")
    for k in range(4): a(f"ds_write_b128 v24, v[{112+4*k}:{115+4*k}] offset:{12288+16*k}")
    a("s_waitcnt lgkmcnt(0)")
    a("s_barrier")
    a("s_cmp_lg_u32 s8, 2")
    a("s_cbranch_scc1 L_b1")
    a("v_lshrrev_b32 v20, 5, v1")
    a("v_and_b32 v21, 31, v1")
    a("v_lshrrev_b32 v22, 3, v21")
    a("v_lshlrev_b32 v22, 6, v22")
    a("v_lshl_add_u32 v22, v20, 5, v22")
    a("v_and_b32 v23, 7, v21")
    a("v_lshl_add_u32 v22, v23, 2, v22")
    for w in range(8): a(f"ds_read_b32 v{112+w}, v22 offset:{12288+256*w}")
    a("s_waitcnt lgkmcnt(0)")
    for w in range(1, 8): a(f"v_add_f32 v112, v112, v{112+w}")
    rnd_bf16(a, 112, 113)
    a("v_mul_f32 v113, s13, v112")
    a("v_exp_f32 v113, -v113")
    a("s_nop 0")
    a("v_add_f32 v113, 1.0, v113")
    a("v_rcp_f32 v113, v113")
    a("s_nop 0")
    a("v_mul_f32 v112, v112, v113")
    rnd_bf16(a, 112, 113)
    a("s_movk_i32 s10, 1728*8")
    a("v_mul_lo_u32 v22, v20, s10")
    a("v_lshl_add_u32 v22, v21, 3, v22")
    a(f"s_sub_u32 s11, s2, {MLP0}")
    a("s_lshl_b32 s11, s11, 8")
    a(f"s_add_u32 s11, s11, {H2}")
    a("v_mov_b32 v113, s101")
    a("buffer_store_dwordx2 v[112:113], v22, s[56:59], s11 offen sc1")
    a.lab("L_b1")
    a("s_cmp_ge_u32 s2, 250")
    a("s_cbranch_scc1 L_end")
    stamp(a, 5)
    a("v_lshlrev_b32 v5, 2, v0")
    a("s_cmp_ge_u32 s8, 4")
    a("s_cbranch_scc1 L_s2")
    a("s_cmp_ge_u32 s2, 160")
    a("s_cbranch_scc1 L_s1h")
    a("v_lshrrev_b32 v6, 7, v0")
    a("v_and_b32 v7, 127, v0")
    a("v_lshlrev_b32 v7, 3, v7")
    a("v_lshl_add_u32 v7, v6, 13, v7")
    a("v_lshlrev_b32 v6, 13, v6")
    a("s_mov_b32 s15, 0")
    a.lab("L_p1")
    a("s_lshl_b32 s10, s80, 14")
    a(f"s_add_u32 s10, s10, {OP2}")
    for b in range(2):
        for s in range(4):
            a(f"buffer_load_dwordx2 v[{112+8*b+2*s}:{113+8*b+2*s}], v7, s[56:59], s10 offen offset:{0} sc1")
            a(f"buffer_load_dwordx4 v[{128+16*b+4*s}:{131+16*b+4*s}], v6, s[56:59], s10 offen offset:1024 sc1")
            a("s_add_u32 s10, s10, 2048")
        if b == 0: a(f"s_add_u32 s10, s10, {32*4*2048 - 4*2048}")
    a("s_waitcnt vmcnt(0)")
    a("v_xor_b32 v20, s101, v113")
    for r in [115,117,119,121,123,125,127] + [129+2*i for i in range(16)]:
        a(f"v_xor_b32 v21, s101, v{r}")
        a("v_or_b32 v20, v20, v21")
    a("v_cmp_ne_u32 vcc, 0, v20")
    a("s_nop 4")
    a("s_cbranch_vccz L_p1d")
    a(f"s_sleep {SLEEP}")
    a("s_add_u32 s15, s15, 1")
    a("s_cmp_lt_u32 s15, 100000")
    a("s_cbranch_scc1 L_p1")
    a.lab("L_p1d")
    for b in range(2):
        for s in range(4):
            a(f"v_mov_b32 v{32+4*b+s}, v{112+8*b+2*s}")
            a(f"v_mov_b32 v{40+8*b+2*s}, v{128+16*b+4*s}")
            a(f"v_mov_b32 v{41+8*b+2*s}, v{130+16*b+4*s}")
    for b in range(2):
        ml = 40 + 8*b; P = 32 + 4*b
        a(f"v_max3_f32 v20, v{ml}, v{ml+2}, v{ml+4}")
        a(f"v_max_f32 v20, v20, v{ml+6}")
        a("v_mul_f32 v20, s13, v20")
        for s in range(4): a(f"v_fma_f32 v{ml+2*s}, v{ml+2*s}, s13, -v20")
        for s in range(4): a(f"v_exp_f32 v{ml+2*s}, v{ml+2*s}")
        a("s_nop 0")
        a(f"v_mul_f32 v21, v{ml}, v{ml+1}")
        for s in range(1, 4): a(f"v_fmac_f32 v21, v{ml+2*s}, v{ml+2*s+1}")
        a("v_rcp_f32 v21, v21")
        a(f"v_mul_f32 v{P}, v{ml}, v{P}")
        for s in range(1, 4): a(f"v_fmac_f32 v{P}, v{ml+2*s}, v{P+s}")
        a(f"v_mul_f32 v{P}, v{P}, v21")
        rnd_bf16(a, P, 22)
    a("ds_write_b32 v5, v32 offset:16384")
    a("ds_write_b32 v5, v36 offset:17408")
    a("s_branch L_s2")
    a.lab("L_s1h")
    a("v_min_u32 v6, 191, v0")
    a("v_lshlrev_b32 v6, 3, v6")
    a("s_mov_b32 s15, 0")
    a.lab("L_p2")
    a("s_lshl_b32 s10, s82, 3")
    a(f"s_add_u32 s10, s10, {H2}")
    a("buffer_load_dwordx2 v[112:113], v6, s[56:59], s10 offen sc1")
    a(f"s_add_u32 s10, s10, {1728*8}")
    a("buffer_load_dwordx2 v[114:115], v6, s[56:59], s10 offen sc1")
    a("s_waitcnt vmcnt(0)")
    a("v_xor_b32 v20, s101, v113")
    a("v_xor_b32 v21, s101, v115")
    a("v_or_b32 v20, v20, v21")
    a("v_cmp_ne_u32 vcc, 0, v20")
    a("s_nop 4")
    a("s_cbranch_vccz L_p2d")
    a(f"s_sleep {SLEEP}")
    a("s_add_u32 s15, s15, 1")
    a("s_cmp_lt_u32 s15, 100000")
    a("s_cbranch_scc1 L_p2")
    a.lab("L_p2d")
    a("v_mov_b32 v32, v112")
    a("v_mov_b32 v36, v114")
    a("v_cmp_gt_u32 vcc, 192, v0")
    a("s_nop 1")
    a("v_cndmask_b32 v32, 0, v32, vcc")
    a("v_cndmask_b32 v36, 0, v36, vcc")
    a("ds_write_b32 v5, v32 offset:16384")
    a("ds_write_b32 v5, v36 offset:17408")
    a.lab("L_s2")
    a("s_waitcnt lgkmcnt(0)")
    a("s_barrier")
    a("v_lshrrev_b32 v2, 3, v1")
    a("v_and_b32 v3, 7, v1")
    a("s_lshl_b32 s10, s8, 7")
    a("v_lshlrev_b32 v6, 2, v2")
    a("v_add_u32 v6, s10, v6")
    for i in range(4):
        a(f"ds_read_b32 v{32+2*i}, v6 offset:{16384+32*i}")
        a(f"ds_read_b32 v{33+2*i}, v6 offset:{17408+32*i}")
    for r in range(112, 128): a(f"v_mov_b32 v{r}, 0")
    a("s_waitcnt lgkmcnt(0)")
    for i in range(4):
        for d in range(4):
            r = 64 + 4*i + d
            a(f"v_lshlrev_b32 v20, 16, v{r}")
            a(f"v_and_b32 v21, 0xffff0000, v{r}")
            for b in range(2):
                a(f"v_fmac_f32 v{112+8*b+2*d}, v{32+2*i+b}, v20")
                a(f"v_fmac_f32 v{113+8*b+2*d}, v{32+2*i+b}, v21")
    regs = list(range(112, 128))
    dpp_reduce(a, regs, (8,))
    xreduce(a, regs, list(range(128, 144)))
    a("s_lshl_b32 s10, s8, 9")
    a("v_lshlrev_b32 v6, 6, v3")
    a("v_add_u32 v6, s10, v6")
    for k in range(4): a(f"ds_write_b128 v6, v[{112+4*k}:{115+4*k}] offset:{18432+16*k}")
    a("s_waitcnt lgkmcnt(0)")
    a("s_barrier")
    a("s_cmp_lg_u32 s8, 0")
    a("s_cbranch_scc1 L_end")
    a("v_lshlrev_b32 v6, 6, v2")
    a("v_lshl_add_u32 v6, v3, 2, v6")
    for w in range(8):
        a(f"ds_read_b32 v{32+w}, v6 offset:{18432+512*w}")
        a(f"ds_read_b32 v{40+w}, v6 offset:{18432+512*w+32}")
    a("s_waitcnt lgkmcnt(0)")
    for w in range(1, 8):
        a(f"v_add_f32 v32, v32, v{32+w}")
        a(f"v_add_f32 v40, v40, v{40+w}")
    a("s_mul_i32 s10, s80, 10240")
    a("s_lshl_b32 s11, s81, 9")
    a("s_add_u32 s10, s10, s11")
    a(f"s_add_u32 s10, s10, {PART2}")
    a("v_lshlrev_b32 v6, 3, v1")
    a("v_mov_b32 v33, s101")
    a("v_mov_b32 v41, s101")
    a("buffer_store_dwordx2 v[32:33], v6, s[56:59], s10 offen sc1")
    a("s_add_u32 s10, s10, 5120")
    a("buffer_store_dwordx2 v[40:41], v6, s[56:59], s10 offen sc1")
    stamp(a, 6)
    a("s_cmp_lg_u32 s80, 24")
    a("s_cbranch_scc1 L_end")
    a("s_mov_b32 s15, 0")
    a.lab("L_p3")
    a("s_lshl_b32 s10, s81, 9")
    a(f"s_add_u32 s10, s10, {PART2}")
    for kb in range(25):
        a(f"buffer_load_dwordx2 v[{148+4*kb}:{149+4*kb}], v6, s[56:59], s10 offen sc1")
        a("s_add_u32 s10, s10, 5120")
        a(f"buffer_load_dwordx2 v[{150+4*kb}:{151+4*kb}], v6, s[56:59], s10 offen sc1")
        a("s_add_u32 s10, s10, 5120")
    a("s_waitcnt vmcnt(0)")
    a("v_mov_b32 v20, 0")
    for kb in range(25):
        for o in (149, 151):
            a(f"v_xor_b32 v21, s101, v{o+4*kb}")
            a("v_or_b32 v20, v20, v21")
    a("v_cmp_ne_u32 vcc, 0, v20")
    a("s_nop 4")
    a("s_cbranch_vccz L_p3d")
    a(f"s_sleep {SLEEP}")
    a("s_add_u32 s15, s15, 1")
    a("s_cmp_lt_u32 s15, 100000")
    a("s_cbranch_scc1 L_p3")
    a.lab("L_p3d")
    for kb in range(25):
        a(f"v_mov_b32 v{40+kb}, v{148+4*kb}")
        a(f"v_mov_b32 v{72+kb}, v{150+4*kb}")
    for base, g in ((40, 110), (72, 111)):
        for kb in range(1, 16): a(f"v_add_f32 v{base}, v{base}, v{base+kb}")
        for kb in range(17, 25): a(f"v_add_f32 v{base+16}, v{base+16}, v{base+kb}")
        rnd_bf16(a, base, 22)
        rnd_bf16(a, base+16, 22)
        a(f"v_mul_f32 v24, v{g}, v{base}")
        rnd_bf16(a, 24, 22)
        a(f"v_sub_f32 v25, 1.0, v{g}")
        rnd_bf16(a, 25, 22)
        a(f"v_mul_f32 v25, v25, v{base+16}")
        rnd_bf16(a, 25, 22)
        a("v_add_f32 v24, v24, v25")
        a(f"v_cvt_pk_bf16_f32 v{base}, v24, v24")
    a("v_lshlrev_b32 v25, 1, v1")
    a("s_lshl_b32 s10, s81, 7")
    a("buffer_store_short v40, v25, s[76:79], s10 offen")
    a("buffer_store_short v72, v25, s[76:79], s10 offen offset:1280")
    stamp(a, 7)
    a.lab("L_end")
    a("s_endpgm")

def main():
    a = A()
    hdr = open(f"cdna_kernels/{NAME}.s.ref").read().split("; Override launch")[0]
    a.raw(hdr.rstrip())
    a.raw("; @launch grid=(256,1,1) block=(512,1,1) lds=24576")
    a.raw('.amdgcn_target "amdgcn-amd-amdhsa--gfx950"')
    a.raw(".text")
    kernel(a)
    a.raw('.section .rodata,"a"')
    a.raw(f""".p2align 6
.amdhsa_kernel {NAME}_kernel
  .amdhsa_next_free_vgpr 256
  .amdhsa_next_free_sgpr 102
  .amdhsa_accum_offset 256
  .amdhsa_group_segment_fixed_size 0
  .amdhsa_kernarg_size 96
  .amdhsa_user_sgpr_count 2
  .amdhsa_user_sgpr_kernarg_segment_ptr 1
  .amdhsa_system_sgpr_workgroup_id_x 1
.end_amdhsa_kernel
""")
    out = sys.argv[1] if len(sys.argv) > 1 else f"cdna_kernels/{NAME}.s"
    open(out, "w").write(a.text())
main()
```
